```python
import torch

def _softmax(x, axis=-1):
    return torch.softmax(x, dim=axis)
def _gelu(x):
    return torch.nn.functional.gelu(x, approximate="tanh")
def _silu(x):
    return torch.nn.functional.silu(x)
def _sigmoid(x):
    return torch.sigmoid(x)
def _layernorm(x, axis=-1, eps=1e-5):
    m = x.mean(dim=axis, keepdim=True)
    v = x.var(dim=axis, keepdim=True, unbiased=False)
    return (x - m) / torch.sqrt(v + eps)
def _scatter_add(tgt, idx, src, axis=0):
    return tgt.clone().index_add_(axis, idx, src)
def _segment_sum(src, seg, n):
    out = torch.zeros((n,) + src.shape[1:], dtype=src.dtype)
    return out.index_add_(0, seg, src)
def _pad(x, pw):
    flat = tuple(v for pair in reversed(pw) for v in pair)
    return torch.nn.functional.pad(x, flat)

kernel_name = 'concat_heads__gqa_block_cached__mha_block_cached__near_ridge'

def setup_inputs():

    _w = (lambda a: (lambda t: t.to(torch.bfloat16) if t.is_floating_point() else t)(torch.as_tensor(a)))
    def _A_setup():
        B, Sq, D = 32, 80, 448
        Hq, Hkv, Sk, Dh = 16, 8, 512, 256
        assert Hq % Hkv == 0, (Hq, Hkv)
        return {
            "x": _w((lambda *s: torch.randn(*s, dtype=torch.bfloat16) * 0.8)(B, Sq, D)),
            "k_cache": _w((lambda *s: torch.randn(*s, dtype=torch.bfloat16) * 0.8)(B, Hkv, Sk, Dh)),
            "v_cache": _w((lambda *s: torch.randn(*s, dtype=torch.bfloat16) * 0.05)(B, Hkv, Sk, Dh)),
            "wq": _w((lambda *s: torch.randn(*s, dtype=torch.bfloat16) * 0.8)(D, Hq * Dh) * (D ** -0.5)),
            "wo": _w((lambda *s: torch.randn(*s, dtype=torch.bfloat16) * 0.05)(Hq * Dh, D) * ((Hq * Dh) ** -0.5)),
        }
    _A_in = _A_setup()

    def _B_setup():
        B, Sq, D = 32, 80, 448
        H, Sk, Dh = 16, 512, 256
        return {
            "x": _w((lambda *s: torch.randn(*s, dtype=torch.bfloat16) * 0.8)(B, Sq, D)),
            "k_cache": _w((lambda *s: torch.randn(*s, dtype=torch.bfloat16) * 0.8)(B, H, Sk, Dh)),
            "v_cache": _w((lambda *s: torch.randn(*s, dtype=torch.bfloat16) * 0.05)(B, H, Sk, Dh)),
            "wq": _w((lambda *s: torch.randn(*s, dtype=torch.bfloat16) * 0.8)(D, H * Dh) * (D ** -0.5)),
            "wo": _w((lambda *s: torch.randn(*s, dtype=torch.bfloat16) * 0.05)(H * Dh, D) * ((H * Dh) ** -0.5)),
        }
    _B_in = _B_setup()

    return {
        "A_x": _A_in["x"],
        "A_k_cache": _A_in["k_cache"],
        "A_v_cache": _A_in["v_cache"],
        "A_wq": _A_in["wq"],
        "A_wo": _A_in["wo"],
        "B_x": _B_in["x"],
        "B_k_cache": _B_in["k_cache"],
        "B_v_cache": _B_in["v_cache"],
        "B_wq": _B_in["wq"],
        "B_wo": _B_in["wo"],
    }

def reference(A_x, A_k_cache, A_v_cache, A_wq, A_wo, B_x, B_k_cache, B_v_cache, B_wq, B_wo):
    def _A_ref(x, k_cache, v_cache, wq, wo):
        B, Sq, D = x.shape
        Hq, Dh = 16, 256
        Hkv = k_cache.shape[1]
        rep = Hq // Hkv
        q = (lambda x, *d: x.permute(*d))((x @ wq).reshape(B, Sq, Hq, Dh), 0, 2, 1, 3)
        k = (lambda x, n, axis: torch.repeat_interleave(x, n, dim=axis))(k_cache, rep, axis=1)
        v = (lambda x, n, axis: torch.repeat_interleave(x, n, dim=axis))(v_cache, rep, axis=1)
        scores = torch.einsum("bhqd,bhkd->bhqk", q, k) * (Dh ** -0.5)
        p = _softmax(scores, axis=-1)
        o = torch.einsum("bhqk,bhkd->bhqd", p, v)
        return (lambda x, *d: x.permute(*d))(o, 0, 2, 1, 3).reshape(B, Sq, Hq * Dh) @ wo

    def _B_ref(x, k_cache, v_cache, wq, wo):
        B, Sq, D = x.shape
        H, Dh = 16, 256
        q = (lambda x, *d: x.permute(*d))((x @ wq).reshape(B, Sq, H, Dh), 0, 2, 1, 3)
        scores = torch.einsum("bhqd,bhkd->bhqk", q, k_cache) * (Dh ** -0.5)
        p = _softmax(scores, axis=-1)
        o = torch.einsum("bhqk,bhkd->bhqd", p, v_cache)
        return (lambda x, *d: x.permute(*d))(o, 0, 2, 1, 3).reshape(B, Sq, H * Dh) @ wo

    a = _A_ref(A_x, A_k_cache, A_v_cache, A_wq, A_wo)
    b = _B_ref(B_x, B_k_cache, B_v_cache, B_wq, B_wo)
    return torch.concatenate([a, b], axis=-1)
```

```python
import sys, argparse

NAME = "concat_heads__gqa_block_cached__mha_block_cached__near_ridge"
HDR = open("cdna_kernels/%s.s.ref" % NAME).read().split("; Override launch geometry")[0]

ACC, ACC2, BF, AF = 0, 80, 160, 200
V_LPKV, V_LPWQ, V_LPWO, V_LPVA = 232, 233, 234, 235
V_TR4 = 236
V_AK = 240
V_TR2 = 242
V_BA, V_BB, V_BH = 244, 245, 246
V_CELL = 247
V_LANE = 248
V_T0 = 249
LDS_RING = 81920
LDS_CELL = 147456
LDS_TOTAL = 163840
S_W = 3
S_RING0, S_RING1 = 4, 5
S_C = 6
S_CNT = 7
S_T0, S_T1, S_T2, S_T3 = 8, 9, 10, 11
S_WB_B, S_WB_A = 12, 13
S_I = 14
S_J = 15
SRD = {}
_s = 16
for ty in "AB":
    for nm in ("X", "WQ", "K", "V", "WO", "P"):
        SRD[ty + nm] = _s; _s += 4
S_PTR = 64
S_STAMP = 64

def vr(b, n=4): return f"v[{b}:{b+n-1}]"
def sr(b, n=4): return f"s[{b}:{b+n-1}]"

class Em:
    def __init__(self):
        self.L = []; self.q = []; self.st = 0
    def e(self, s): self.L.append("    " + s)
    def lab(self, s): self.L.append(s + ":")
    def ds(self, text, dst=(), tag=None):
        self.e(text); self.q.append((set(dst), tag))
    def _wait_idx(self, idx):
        if idx < 0: return
        n = len(self.q) - 1 - idx
        n = min(n, 15)
        self.e(f"s_waitcnt lgkmcnt({n})")
        self.q = self.q[len(self.q) - n:] if n > 0 else []
    def need(self, regs):
        regs = set(regs); idx = -1
        for i, (d, t) in enumerate(self.q):
            if d & regs: idx = i
        self._wait_idx(idx)
    def need_tag(self, tag):
        idx = -1
        for i, (d, t) in enumerate(self.q):
            if t == tag: idx = i
        self._wait_idx(idx)
    def drain(self):
        self.e("s_waitcnt lgkmcnt(0)"); self.q = []
    def stmp(self):
        self.st ^= 1
        return S_T0 + self.st

def acc_reg(base, p, e, t): return base + ((p * 2 + e) * 5 + t) * 4

def seg_offsets(seg, k):
    if seg == "WQ": return [(32 * k + r) * 8192 for r in (0, 16, 4, 20)]
    if seg == "KB":
        hf, c, p = k >> 3, (k >> 1) & 3, k & 1
        return [(256 * hf + 32 * p + 8 * b) * 512 + c * 128 for b in range(4)]
    if seg == "VB": return [(32 * k + 8 * b) * 512 for b in range(4)]
    if seg == "KA":
        hf, c = k >> 2, k & 3
        return [(256 * hf + 8 * b) * 512 + c * 128 for b in range(4)]
    if seg == "VA": return [(64 * k + 16 * b) * 512 for b in range(4)]
    if seg == "WO": return [(32 * k + 8 * b) * 896 for b in range(4)]
    raise ValueError(seg)
SEG_LP = {"WQ": V_LPWQ, "KB": V_LPKV, "VB": V_LPKV, "KA": V_LPKV, "VA": V_LPVA, "WO": V_LPWO}
SEG_RD = {"WQ": "tr4", "KB": "k", "VB": "tr4", "KA": "k", "VA": "tr2", "WO": "tr4"}
SEG_NT = {"WQ": "", "KB": " nt", "VB": " nt", "KA": " nt", "VA": " nt", "WO": ""}
def seg_srd(ty, seg): return SRD[ty + {"WQ": "WQ", "KB": "K", "KA": "K", "VB": "V", "VA": "V", "WO": "WO"}[seg]]

def stream_of(ty):
    o = "B" if ty == "A" else "A"
    st = [(ty, "WQ", k) for k in range(14)]
    n = 16 if ty == "B" else 8
    st += [(ty, "K" + ty, k) for k in range(n)]
    st += [(ty, "V" + ty, k) for k in range(n)]
    st += [(ty, "WO", k) for k in range(16)]
    st += [(o, "WQ", k) for k in range(3)]
    return st

def refill(E, pos, half, unit):
    ty, seg, k = pos
    offs = seg_offsets(seg, k)
    E.e(f"s_mov_b32 m0, s{S_RING0 + half}")
    for b in (2 * unit, 2 * unit + 1):
        s = E.stmp()
        E.e(f"s_mov_b32 s{s}, {offs[b] - 1024 * b}")
        off = f" offset:{1024*b}" if b else ""
        E.e(f"buffer_load_dwordx4 v{SEG_LP[seg]}, {sr(seg_srd(ty, seg))}, s{s} offen{off}{SEG_NT[seg]} lds")

def a_reads(E, pos, half, unit):
    rd = SEG_RD[pos[1]]
    af = AF + half * 16
    base = half * 4096 + unit * 2048
    tag = ("A", unit)
    if rd == "tr4":
        for u in range(4):
            d = af + u * 4 + 2 * unit
            E.ds(f"ds_read_b64_tr_b16 {vr(d,2)}, v{V_TR4+u} offset:{base}", (d, d + 1), tag)
    elif rd == "k":
        for e in range(2):
            d = af + (unit * 2 + e) * 4
            E.ds(f"ds_read_b128 {vr(d)}, v{V_AK+e} offset:{base}", range(d, d + 4), tag)
    else:
        for tp in range(2):
            for h in range(2):
                d = af + (tp * 2 + unit) * 4 + 2 * h
                E.ds(f"ds_read_b64_tr_b16 {vr(d,2)}, v{V_TR2+tp} offset:{base + h*1024}", (d, d + 1), tag)

def b_addr(mode, frag):
    if mode == "h": return V_BH, frag * 1024
    if frag < 40: return V_BA, frag * 1024
    return V_BB, (frag - 40) * 1024

def gemm_phase(E, st, n0, steps, bmode, opt):
    flat = [m for s in steps for m in s]
    loads = []; last = {}; slot = {}
    for i, (acc, aidx, bkey, first) in enumerate(flat):
        if bkey not in slot:
            slot[bkey] = len(loads) % 10; loads.append(bkey)
        last[bkey] = i
    nxt = [0]
    def issue_b():
        k = loads[nxt[0]]; d = BF + slot[k] * 4
        v, off = b_addr(bmode, k[1])
        E.ds(f"ds_read_b128 {vr(d)}, v{v} offset:{off}", range(d, d + 4), "B")
        nxt[0] += 1
    while nxt[0] < min(10, len(loads)): issue_b()
    gi = 0
    for hs, ms in enumerate(steps):
        n = n0 + hs
        M = len(ms)
        sc = M // 20
        sites = {opt.s0 * sc: ("rd", 0), opt.s1 * sc: ("rf", 0), opt.s2 * sc: ("rd", 1), opt.s3 * sc: ("rf", 1)}
        for mi, (acc, aidx, bkey, first) in enumerate(ms):
            a = AF + (n & 1) * 16 + aidx * 4
            b = BF + slot[bkey] * 4
            E.need(list(range(a, a + 4)) + list(range(b, b + 4)))
            c = "0" if first else vr(acc)
            E.e(f"v_mfma_f32_16x16x32_bf16 {vr(acc)}, {vr(a)}, {vr(b)}, {c}")
            while nxt[0] < len(loads) and last[loads[nxt[0] - 10]] <= gi: issue_b()
            if mi in sites:
                what, unit = sites[mi]
                if what == "rd":
                    E.e("s_waitcnt vmcnt(6)")
                    a_reads(E, st[n + 1], (n + 1) & 1, unit)
                else:
                    E.need_tag(("A", unit))
                    refill(E, st[n + 3], (n + 1) & 1, unit)
            gi += 1
    E.e("s_nop 7")

def steps_tr4(nk, acc, frag0, first):
    out = []
    for k in range(nk):
        out.append([(acc_reg(acc, u >> 1, u & 1, t), u, (0, frag0 + k * 5 + t), first and k == 0) for t in range(5) for u in range(4)])
    return out
def steps_k4():
    out = []
    for k in range(16):
        hf, c, p = k >> 3, (k >> 1) & 3, k & 1
        acc = ACC2 if hf == 0 else ACC
        out.append([(acc_reg(acc, p, u, t), u * 2 + e, (hf, (2 * c + e) * 5 + t), c == 0 and e == 0)
                    for e in range(2) for t in range(5) for u in range(2)])
    return out
def steps_a(kind, hf):
    out = []
    if kind == "k":
        for k in range(8):
            h, c = k >> 2, k & 3
            acc = ACC2 if h == 0 else ACC
            out.append([(acc_reg(acc, i, u, t), u * 2 + e, (h, i * 40 + (2 * c + e) * 5 + t), c == 0 and e == 0)
                        for e in range(2) for i in range(2) for t in range(5) for u in range(2)])
    else:
        for c in range(4):
            out.append([(acc_reg(ACC, i, u, t), u * 2 + e, (0, i * 40 + (2 * c + e) * 5 + t), hf == 0 and c == 0 and e == 0)
                        for e in range(2) for i in range(2) for t in range(5) for u in range(2)])
    return out

class Gen:
    def __init__(self, opt):
        self.opt = opt; self.E = Em(); self.nst = 0
    def stamp(self, ty=None):
        if not self.opt.stamps: return
        E = self.E
        E.drain()
        E.e(f"s_memtime s[{S_T2}:{S_T3}]"); E.e("s_waitcnt lgkmcnt(0)")
        E.e(f"s_mov_b32 s{S_STAMP + self.nst}, s{S_T2}")
        self.nst += 1
    def barrier(self):
        self.E.drain(); self.E.e("s_barrier"); self.stamp()
    def dump_check(self, ty, stage):
        if self.opt.dump == f"{ty}{stage}":
            self.E.e("s_branch L_dump")

    def x_load(self, ty):
        E = self.E
        t0 = V_T0
        E.e(f"v_lshrrev_b32 v{t0}, 2, v{V_LANE}")
        E.e(f"v_mul_u32_u24 v{t0}, 896, v{t0}")
        E.e(f"v_and_b32 v{t0+1}, 3, v{V_LANE}")
        E.e(f"v_lshl_add_u32 v{t0}, v{t0+1}, 4, v{t0}")
        for t in range(5):
            s = E.stmp()
            E.e(f"s_mov_b32 s{s}, {t*14336}")
            for sp in range(2):
                d = ACC2 + (sp * 5 + t) * 4
                off = " offset:64" if sp else ""
                E.e(f"buffer_load_dwordx4 {vr(d)}, v{t0}, {sr(SRD[ty+'X'])}, s{s} offen{off}")
    def x_write(self):
        E = self.E
        t0 = V_T0
        E.e(f"v_lshrrev_b32 v{t0}, 2, v{V_LANE}")
        E.e(f"v_and_b32 v{t0+1}, 3, v{V_LANE}")
        E.e(f"v_lshlrev_b32 v{t0+2}, 1, v{t0+1}")
        E.e(f"v_xor_b32 v{t0}, v{t0}, v{t0+2}")
        E.e(f"v_lshl_add_u32 v{t0}, v{t0+1}, 4, v{t0}")
        E.e(f"v_lshlrev_b32 v{t0}, 4, v{t0}")
        E.e(f"s_mul_i32 s{S_T2}, s{S_W}, 10240")
        E.e(f"v_add_u32 v{t0}, s{S_T2}, v{t0}")
        for f in range(10):
            E.ds(f"ds_write_b128 v{t0}, {vr(ACC2+f*4)} offset:{f*1024}")
        E.e(f"v_lshlrev_b32 v{t0+1}, 2, v{V_LANE}")
        E.e(f"v_add_u32 v{t0+1}, {LDS_CELL}, v{t0+1}")
        E.e(f"v_mov_b32 v{t0+2}, 0xff800000")
        E.e(f"v_mov_b32 v{t0+3}, 0")
        for i in range(3):
            E.ds(f"ds_write_b32 v{t0+1}, v{t0+2} offset:{i*256}")
            E.ds(f"ds_write_b32 v{t0+1}, v{t0+3} offset:{1024+i*256}")

    def q_write(self):
        E = self.E
        t0 = V_T0
        E.e(f"v_and_b32 v{t0+2}, 15, v{V_LANE}")
        E.e(f"v_lshrrev_b32 v{t0+3}, 5, v{V_LANE}")
        E.e(f"v_bfe_u32 v{t0+4}, v{V_LANE}, 4, 1")
        for up in range(2):
            E.e(f"v_add_u32 v{t0+5}, {2*up}, v{t0+3}")
            E.e(f"v_lshlrev_b32 v{t0+6}, 1, v{t0+5}")
            E.e(f"v_xor_b32 v{t0+6}, v{t0+2}, v{t0+6}")
            E.e(f"v_lshl_add_u32 v{t0+6}, v{t0+5}, 4, v{t0+6}")
            E.e(f"v_lshlrev_b32 v{t0+6}, 4, v{t0+6}")
            E.e(f"v_lshl_add_u32 v{t0+6}, v{t0+4}, 3, v{t0+6}")
            E.e(f"v_add_u32 v{t0+up}, s{S_WB_B}, v{t0+6}")
        for p in range(2):
            for e in range(2):
                for t in range(5):
                    a = acc_reg(ACC, p, e, t)
                    E.e(f"v_cvt_pk_bf16_f32 v{a}, v{a}, v{a+1}")
                    E.e(f"v_cvt_pk_bf16_f32 v{a+1}, v{a+2}, v{a+3}")
        self.barrier()
        for p in range(2):
            for e in range(2):
                for t in range(5):
                    a = acc_reg(ACC, p, e, t)
                    E.ds(f"ds_write_b64 v{t0+e}, {vr(a,2)} offset:{(p*5+t)*1024}")

    def groups(self, ty):
        if ty == "B": return [(t * 64, [(0, t), (1, t)]) for t in range(5)]
        return [(p * 320 + t * 64, [(p, t)]) for p in range(2) for t in range(5)]
    def cell_addr(self, ty, dst):
        E = self.E
        if ty == "B":
            E.e(f"s_mul_i32 s{S_T2}, s{S_I}, 320")
            E.e(f"v_add_u32 v{dst}, s{S_T2}, v{V_CELL}")
        else:
            E.e(f"v_mov_b32 v{dst}, v{V_CELL}")
    def wr_addr(self, ty, dst):
        self.E.e(f"v_add_u32 v{dst}, s{S_WB_B if ty == 'B' else S_WB_A}, v{V_BA}")
    def wr_off(self, ty, p, t): return (p * 5 + t) * 1024 if ty == "B" else (p * 40 + t) * 1024

    def softmax(self, ty):
        E = self.E
        G = self.groups(ty)
        VM = BF
        VS = BF + 10
        VQ = BF + 20
        vc, vw = V_T0, V_T0 + 1
        self.cell_addr(ty, vc); self.wr_addr(ty, vw)
        mem = []
        for gi, (off, pts) in enumerate(G):
            regs = [acc_reg(a, p, e, t) + r for a in (ACC2, ACC) for (p, t) in pts for e in range(2) for r in range(4)]
            mem.append(regs)
        n = len(mem[0])
        for gi in range(len(G)):
            E.e(f"v_max_f32 v{VM+gi}, v{mem[gi][0]}, v{mem[gi][1]}")
        for k in range(2, n, 2):
            for gi in range(len(G)):
                E.e(f"v_max3_f32 v{VM+gi}, v{VM+gi}, v{mem[gi][k]}, v{mem[gi][k+1]}")
        for gi, (off, pts) in enumerate(G):
            E.ds(f"ds_max_f32 v{vc}, v{VM+gi} offset:{off}")
        self.barrier()
        for gi, (off, pts) in enumerate(G):
            E.ds(f"ds_read_b32 v{VM+gi}, v{vc} offset:{off}", (VM + gi,))
        for gi in range(len(G)):
            E.e(f"v_mov_b32 v{VS+gi}, 0")
        for gi in range(len(G)):
            E.need((VM + gi,))
            E.e(f"v_mul_f32 v{VM+gi}, s{S_C}, v{VM+gi}")
        gof = {}
        for gi, (off, pts) in enumerate(G):
            for pt in pts: gof[pt] = gi
        for ai, a in enumerate((ACC2, ACC)):
            for p in range(2):
                for t in range(5):
                    gi = gof[(p, t)]
                    regs = [acc_reg(a, p, e, t) + r for e in range(2) for r in range(4)]
                    for r in regs: E.e(f"v_fma_f32 v{r}, v{r}, s{S_C}, -v{VM+gi}")
                    for r in regs: E.e(f"v_exp_f32 v{r}, v{r}")
                    d = (VQ + t * 4) if ai == 0 else (ACC2 + (p * 5 + t) * 4)
                    for k in range(4):
                        E.e(f"v_cvt_pk_bf16_f32 v{d+k}, v{regs[2*k]}, v{regs[2*k+1]}")
                    for k in range(4): E.e(f"v_add_f32 v{regs[2*k]}, v{regs[2*k]}, v{regs[2*k+1]}")
                    E.e(f"v_add_f32 v{regs[0]}, v{regs[0]}, v{regs[2]}")
                    E.e(f"v_add_f32 v{regs[4]}, v{regs[4]}, v{regs[6]}")
                    if ai == 0:
                        E.ds(f"ds_write_b128 v{vw}, {vr(d)} offset:{self.wr_off(ty,p,t)}")
                    E.e(f"v_add_f32 v{regs[0]}, v{regs[0]}, v{regs[4]}")
                    E.e(f"v_add_f32 v{VS+gi}, v{VS+gi}, v{regs[0]}")
        for gi, (off, pts) in enumerate(G):
            E.ds(f"ds_add_f32 v{vc}, v{VS+gi} offset:{1024+off}")
        self.barrier()

    def p2_write(self, ty):
        E = self.E
        vw = V_T0 + 1
        self.wr_addr(ty, vw)
        self.barrier()
        for p in range(2):
            for t in range(5):
                E.ds(f"ds_write_b128 v{vw}, {vr(ACC2+(p*5+t)*4)} offset:{self.wr_off(ty,p,t)}")
        self.barrier()

    def o_write(self, ty):
        E = self.E
        G = self.groups(ty)
        VS = BF
        vc, vw = V_T0, V_T0 + 1
        self.cell_addr(ty, vc); self.wr_addr(ty, vw)
        for gi, (off, pts) in enumerate(G):
            E.ds(f"ds_read_b32 v{VS+gi}, v{vc} offset:{1024+off}", (VS + gi,))
        for gi in range(len(G)):
            E.need((VS + gi,))
            E.e(f"v_rcp_f32 v{VS+gi}, v{VS+gi}")
        E.e("s_nop 0")
        for gi, (off, pts) in enumerate(G):
            for (p, t) in pts:
                regs = [acc_reg(ACC, p, e, t) + r for e in range(2) for r in range(4)]
                for r in regs: E.e(f"v_mul_f32 v{r}, v{r}, v{VS+gi}")
                d = ACC2 + 40 + (p * 5 + t) * 4
                for k in range(4):
                    E.e(f"v_cvt_pk_bf16_f32 v{d+k}, v{regs[2*k]}, v{regs[2*k+1]}")
        self.barrier()
        for p in range(2):
            for t in range(5):
                E.ds(f"ds_write_b128 v{vw}, {vr(ACC2+40+(p*5+t)*4)} offset:{self.wr_off(ty,p,t)}")
        self.barrier()

    def part_store(self, ty):
        E = self.E
        va = V_T0
        E.e(f"v_lshlrev_b32 v{va}, 4, v{V_LANE}")
        for p in range(2):
            for t in range(5):
                regs = [acc_reg(ACC, p, e, t) + r for e in range(2) for r in range(4)]
                d = ACC2 + 40 + (p * 5 + t) * 4
                for k in range(4):
                    E.e(f"v_cvt_pk_bf16_f32 v{d+k}, v{regs[2*k]}, v{regs[2*k+1]}")
                f = p * 5 + t
                s = E.stmp()
                E.e(f"s_mov_b32 s{s}, {f*1024}")
                E.e(f"buffer_store_dwordx4 {vr(d)}, v{va}, {sr(SRD[ty+'P'])}, s{s} offen{self.opt.pst}")

    def round(self, ty):
        E = self.E; opt = self.opt
        o = "B" if ty == "A" else "A"
        st = stream_of(ty)
        if ty == "B": self.nst = 16
        else: self.nst = 2
        E.lab(f"L_round{ty}")
        self.x_write()
        self.barrier()
        self.dump_check(ty, "x")
        n = 0
        gemm_phase(E, st, n, steps_tr4(14, ACC, 0, True), "g", opt); n += 14
        E.e(f"s_mov_b32 s{SRD[ty+'WQ']+2}, 0")
        E.e(f"s_mov_b32 s{SRD[ty+'X']+2}, 0")
        self.q_write()
        self.barrier()
        self.dump_check(ty, "q")
        if ty == "B":
            gemm_phase(E, st, n, steps_k4(), "h", opt); n += 16
        else:
            gemm_phase(E, st, n, steps_a("k", 0), "g", opt); n += 8
        self.softmax(ty)
        self.dump_check(ty, "p")
        for hf in range(2):
            if ty == "B":
                gemm_phase(E, st, n, steps_tr4(8, ACC, 0, hf == 0), "h", opt); n += 8
            else:
                gemm_phase(E, st, n, steps_a("v", hf), "g", opt); n += 4
            if hf == 0: self.p2_write(ty)
        self.x_load(o)
        self.o_write(ty)
        self.dump_check(ty, "o")
        gemm_phase(E, st, n, steps_tr4(16, ACC, 0, True), "g", opt); n += 16
        assert n + 3 == len(st)
        self.part_store(ty)
        E.e(f"s_add_u32 s{S_CNT}, s{S_CNT}, 1")
        E.e(f"s_cmp_eq_u32 s{S_CNT}, 2")
        E.e("s_cbranch_scc1 L_end")
        self.barrier()
        if ty == "B": E.e("s_branch L_roundA")

    def srd(self, name, ptr, off_s, total, zero_w7=False):
        E = self.E; d = SRD[name]
        E.e(f"s_add_u32 s{d}, s{S_PTR+2*ptr}, s{off_s}")
        E.e(f"s_addc_u32 s{d+1}, s{S_PTR+2*ptr+1}, 0")
        E.e(f"s_sub_u32 s{d+2}, {total}, s{off_s}")
        E.e(f"s_mov_b32 s{d+3}, 0x20000")
        if zero_w7:
            E.e(f"s_cmp_eq_u32 s{S_W}, 7")
            E.e(f"s_cselect_b32 s{d+2}, 0, s{d+2}")

    def setup(self):
        E = self.E
        E.e("s_cmp_ge_u32 s2, 256"); E.e("s_cbranch_scc1 L_exit")
        E.e(f"s_load_dwordx16 s[{S_PTR}:{S_PTR+15}], s[0:1], 0")
        E.e(f"s_load_dwordx8 s[{S_PTR+16}:{S_PTR+23}], s[0:1], 64")
        E.e(f"s_load_dwordx2 s[{S_PTR+24}:{S_PTR+25}], s[0:1], 96")
        E.e(f"v_lshrrev_b32 v1, 6, v0")
        E.e(f"v_and_b32 v{V_LANE}, 63, v0")
        E.e(f"v_readfirstlane_b32 s{S_W}, v1")
        L = V_LANE
        E.e(f"v_and_b32 v1, 7, v{L}")
        E.e(f"v_lshrrev_b32 v2, 4, v{L}")
        E.e(f"v_lshlrev_b32 v3, 1, v2")
        E.e(f"v_xor_b32 v1, v1, v3")
        E.e(f"v_lshlrev_b32 v1, 4, v1")
        E.e(f"v_lshrrev_b32 v4, 3, v{L}")
        E.e(f"v_lshl_add_u32 v{V_LPKV}, v4, 9, v1")
        E.e(f"v_mul_u32_u24 v5, 896, v4")
        E.e(f"v_add_u32 v{V_LPWO}, v5, v1")
        E.e(f"v_and_b32 v5, 3, v4")
        E.e(f"v_lshrrev_b32 v6, 2, v4")
        E.e(f"v_lshl_add_u32 v5, v6, 3, v5")
        E.e(f"v_lshl_add_u32 v{V_LPWQ}, v5, 13, v1")
        E.e(f"v_and_b32 v5, 3, v{L}")
        E.e(f"v_and_b32 v6, 2, v3")
        E.e(f"v_xor_b32 v5, v5, v6")
        E.e(f"v_lshlrev_b32 v5, 4, v5")
        E.e(f"v_lshrrev_b32 v6, 2, v{L}")
        E.e(f"v_lshl_add_u32 v{V_LPVA}, v6, 9, v5")
        E.e(f"s_lshl_b32 s{S_RING0}, s{S_W}, 13")
        E.e(f"s_add_u32 s{S_RING0}, s{S_RING0}, {LDS_RING}")
        E.e(f"s_add_u32 s{S_RING1}, s{S_RING0}, 4096")
        E.e(f"s_lshr_b32 s{S_I}, s{S_W}, 2")
        E.e(f"s_and_b32 s{S_J}, s{S_W}, 3")
        E.e(f"v_bfe_u32 v5, v{L}, 2, 3")
        E.e(f"v_lshrrev_b32 v6, 1, v5")
        E.e(f"v_lshlrev_b32 v6, 1, v6")
        E.e(f"v_bfe_u32 v7, v{L}, 1, 1")
        E.e(f"v_xor_b32 v6, v6, v7")
        E.e(f"v_lshlrev_b32 v6, 4, v6")
        E.e(f"v_lshl_add_u32 v6, v5, 7, v6")
        E.e(f"v_and_b32 v8, 1, v{L}")
        E.e(f"v_lshl_add_u32 v6, v8, 3, v6")
        E.e(f"v_lshrrev_b32 v9, 5, v{L}")
        E.e(f"v_lshl_add_u32 v6, v9, 10, v6")
        E.e(f"v_add_u32 v{V_TR4}, s{S_RING0}, v6")
        for t in range(1, 4): E.e(f"v_xor_b32 v{V_TR4+t}, {t<<5}, v{V_TR4}")
        E.e(f"v_lshrrev_b32 v6, 2, v5")
        E.e(f"v_lshlrev_b32 v6, 1, v6")
        E.e(f"v_xor_b32 v6, v6, v7")
        E.e(f"v_lshlrev_b32 v6, 4, v6")
        E.e(f"v_lshl_add_u32 v6, v8, 3, v6")
        E.e(f"v_lshl_add_u32 v10, v9, 3, v5")
        E.e(f"v_lshl_add_u32 v6, v10, 6, v6")
        E.e(f"v_add_u32 v{V_TR2}, s{S_RING0}, v6")
        E.e(f"v_xor_b32 v{V_TR2+1}, 32, v{V_TR2}")
        E.e(f"v_and_b32 v5, 15, v{L}")
        E.e(f"v_and_b32 v6, 6, v{L}")
        E.e(f"v_xor_b32 v6, v6, v2")
        E.e(f"v_lshlrev_b32 v6, 4, v6")
        E.e(f"v_lshl_add_u32 v6, v5, 7, v6")
        E.e(f"v_add_u32 v{V_AK}, s{S_RING0}, v6")
        E.e(f"v_xor_b32 v{V_AK+1}, 64, v{V_AK}")
        E.e(f"v_xor_b32 v6, v5, v3")
        E.e(f"v_lshl_add_u32 v6, v2, 4, v6")
        E.e(f"v_lshlrev_b32 v{V_BA}, 4, v6")
        E.e(f"v_add_u32 v{V_BB}, 40960, v{V_BA}")
        E.e(f"s_mul_i32 s{S_T0}, s{S_I}, 40960")
        E.e(f"v_add_u32 v{V_BH}, s{S_T0}, v{V_BA}")
        E.e(f"v_lshlrev_b32 v6, 2, v5")
        E.e(f"v_add_u32 v{V_CELL}, {LDS_CELL}, v6")
        E.e(f"s_mul_i32 s{S_WB_B}, s{S_W}, 10240")
        E.e(f"s_mul_i32 s{S_WB_A}, s{S_W}, 5120")
        E.e(f"s_mov_b32 s{S_C}, 0x3db8aa3b")
        E.e(f"s_mov_b32 s{S_CNT}, 0")
        J, B = 90, 91
        E.e(f"s_and_b32 s{J}, s2, 7"); E.e(f"s_lshr_b32 s{B}, s2, 3")
        E.e("s_waitcnt lgkmcnt(0)")
        T = S_T0
        for ty, pb in (("A", 0), ("B", 5)):
            E.e(f"s_mul_i32 s{T}, s{B}, 71680"); E.e(f"s_lshl_b32 s{T+1}, s{S_W}, 7"); E.e(f"s_add_u32 s{T}, s{T}, s{T+1}")
            self.srd(ty + "X", pb + 0, T, 32 * 71680, True)
            E.e(f"s_lshl_b32 s{T}, s{J}, 10"); E.e(f"s_add_u32 s{T}, s{T}, s{T+1}")
            self.srd(ty + "WQ", pb + 3, T, 448 * 8192)
            E.e(f"s_mul_i32 s{T}, s{J}, {512*896}"); E.e(f"s_add_u32 s{T}, s{T}, s{T+1}")
            self.srd(ty + "WO", pb + 4, T, 4096 * 896, True)
            if ty == "A":
                tot = 32 * 8 * 262144
                E.e(f"s_lshl_b32 s{T+2}, s2, 18")
                E.e(f"s_lshl_b32 s{T}, s{S_W}, 14"); E.e(f"s_add_u32 s{T}, s{T}, s{T+2}")
                self.srd("AK", 1, T, tot)
                E.e(f"s_lshl_b32 s{T}, s{S_W}, 6"); E.e(f"s_add_u32 s{T}, s{T}, s{T+2}")
                self.srd("AV", 2, T, tot)
            else:
                tot = 32 * 16 * 262144
                E.e(f"s_lshl_b32 s{T+2}, s2, 19")
                E.e(f"s_lshl_b32 s{T}, s{S_I}, 18"); E.e(f"s_add_u32 s{T+2}, s{T+2}, s{T}")
                E.e(f"s_lshl_b32 s{T}, s{S_J}, 15"); E.e(f"s_add_u32 s{T}, s{T}, s{T+2}")
                self.srd("BK", 6, T, tot)
                E.e(f"s_lshl_b32 s{T}, s{S_J}, 7"); E.e(f"s_add_u32 s{T}, s{T}, s{T+2}")
                self.srd("BV", 7, T, tot)
            br = 0 if ty == "A" else 1
            E.e(f"s_add_u32 s{T}, s2, {br*256}"); E.e(f"s_mul_i32 s{T}, s{T}, 71680"); E.e(f"s_add_u32 s{T}, s{T}, s{S_WB_B}")
            self.srd(ty + "P", 12, T, 512 * 71680, True)
        if self.opt.dump or self.opt.stamps:
            E.e(f"s_mov_b32 s92, s{S_PTR+24}"); E.e(f"s_mov_b32 s93, s{S_PTR+25}")
        self.nst = 0
        self.stamp()
        if self.opt.order == "par":
            E.e(f"s_and_b32 s{T}, s{B}, 1"); E.e(f"s_cmp_eq_u32 s{T}, 0")
        elif self.opt.order == "A": E.e("s_cmp_eq_u32 s2, s2")
        else: E.e("s_cmp_lg_u32 s2, s2")
        E.e("s_cbranch_scc1 L_initA")
        for ty in "BA":
            E.lab(f"L_init{ty}")
            st = stream_of(ty)
            self.x_load(ty)
            for pos in range(2):
                for unit in range(2): refill(E, st[pos], pos, unit)
            for unit in range(2):
                E.e("s_waitcnt vmcnt(6)")
                a_reads(E, st[0], 0, unit)
                E.need_tag(("A", unit))
                refill(E, st[2], 0, unit)
            if ty == "B": E.e("s_branch L_roundB")

    def main_kernel(self):
        E = self.E
        k = "attn_main_kernel"
        E.L += [".text", f".globl {k}", ".p2align 8", f".type {k},@function", f"{k}:"]
        self.setup()
        self.round("A")
        self.round("B")
        E.lab("L_end")
        E.e("s_waitcnt vmcnt(0)")
        if self.opt.stamps:
            self.nst = 30
            E.e("s_waitcnt vmcnt(0)")
            self.stamp()
            E.e(f"s_lshl_b32 s{S_T0}, s2, 3"); E.e(f"s_add_u32 s{S_T0}, s{S_T0}, s{S_W}"); E.e(f"s_lshl_b32 s{S_T0}, s{S_T0}, 7")
            E.e(f"s_add_u32 s{S_T0}, s{S_T0}, {64<<20}")
            E.e(f"v_mov_b32 v0, s{S_T0}")
            for i in range(32):
                if S_STAMP + i in (92, 93): continue
                E.e(f"v_mov_b32 v1, s{S_STAMP+i}")
                E.e(f"global_store_dword v0, v1, s[92:93] offset:{4*i}")
        E.lab("L_exit")
        E.e("s_endpgm")
        if self.opt.dump:
            E.lab("L_dump")
            E.e("s_waitcnt vmcnt(0) lgkmcnt(0)")
            E.e(f"s_mul_i32 s{S_T0}, s{S_W}, 20480")
            E.e(f"v_lshlrev_b32 v0, 4, v{V_LANE}")
            E.e(f"v_add_u32 v0, s{S_T0}, v0")
            E.e(f"s_mul_i32 s{S_T1}, s2, 163840"); E.e(f"s_add_u32 s{S_T1}, s{S_T1}, {128<<20}")
            E.e(f"v_add_u32 v1, s{S_T1}, v0")
            for f in range(20):
                E.e(f"ds_read_b128 v[4:7], v0 offset:{f*1024}")
                E.e("s_waitcnt lgkmcnt(0)")
                E.e(f"global_store_dwordx4 v1, v[4:7], s[92:93]")
                E.e("v_add_u32 v1, 1024, v1")
                E.e("s_nop 1")
            E.e("s_endpgm")

    def reduce_kernel(self):
        E = self.E
        k = "attn_reduce_kernel"
        E.L += [f".globl {k}", ".p2align 8", f".type {k},@function", f"{k}:"]
        E.e("s_cmp_ge_u32 s2, 1120"); E.e("s_cbranch_scc1 L_rexit")
        E.e("s_load_dwordx2 s[4:5], s[0:1], 96")
        E.e("s_load_dwordx2 s[6:7], s[0:1], 80")
        E.e("v_lshrrev_b32 v1, 6, v0"); E.e("v_and_b32 v2, 63, v0")
        E.e("v_readfirstlane_b32 s3, v1")
        E.e("s_nop 3")
        E.e("s_lshl_b32 s16, s2, 2"); E.e("s_add_u32 s16, s16, s3")
        E.e(f"s_mul_hi_u32 s17, s16, {(1<<32)//70+1}")
        E.e("s_mul_i32 s18, s17, 70"); E.e("s_sub_u32 s18, s16, s18")
        E.e(f"s_mul_i32 s19, s17, {8*71680}"); E.e("s_lshl_b32 s20, s18, 10"); E.e("s_add_u32 s19, s19, s20")
        E.e("v_lshlrev_b32 v3, 4, v2")
        E.e("s_waitcnt lgkmcnt(0)")
        E.e("s_mov_b32 s8, s4"); E.e("s_mov_b32 s9, s5"); E.e(f"s_mov_b32 s10, {512*71680}"); E.e("s_mov_b32 s11, 0x20000")
        E.e("s_mov_b32 s12, s6"); E.e("s_mov_b32 s13, s7"); E.e(f"s_mov_b32 s14, {32*80*896*2}"); E.e("s_mov_b32 s15, 0x20000")
        for j in range(8):
            E.e(f"buffer_load_dwordx4 v[{8+4*j}:{11+4*j}], v3, s[8:11], s19 offen{self.opt.pld}")
            E.e(f"s_add_u32 s19, s19, 71680")
        E.e(f"s_mul_hi_u32 s21, s18, {(1<<32)//5+1}")
        E.e("s_mul_i32 s22, s21, 5"); E.e("s_sub_u32 s22, s18, s22")
        E.e("s_lshr_b32 s23, s17, 5"); E.e("s_and_b32 s24, s17, 31")
        E.e("s_mul_i32 s25, s24, 80"); E.e("s_lshl_b32 s26, s22, 4"); E.e("s_add_u32 s25, s25, s26"); E.e("s_mul_i32 s25, s25, 1792")
        E.e("s_mul_i32 s26, s23, 896"); E.e("s_add_u32 s25, s25, s26")
        E.e("s_lshl_b32 s26, s21, 6"); E.e("s_add_u32 s25, s25, s26")
        E.e("v_and_b32 v4, 15, v2"); E.e("v_mul_u32_u24 v4, 1792, v4")
        E.e("v_lshrrev_b32 v5, 4, v2"); E.e("v_lshl_add_u32 v4, v5, 3, v4")
        for j in range(8):
            E.e(f"s_waitcnt vmcnt({7-j})")
            for k in range(4):
                r = 8 + 4 * j + k
                if j == 0:
                    E.e(f"v_lshlrev_b32 v{40+2*k}, 16, v{r}"); E.e(f"v_and_b32 v{41+2*k}, 0xffff0000, v{r}")
                else:
                    E.e(f"v_lshlrev_b32 v48, 16, v{r}"); E.e(f"v_and_b32 v49, 0xffff0000, v{r}")
                    E.e(f"v_add_f32 v{40+2*k}, v{40+2*k}, v48"); E.e(f"v_add_f32 v{41+2*k}, v{41+2*k}, v49")
        for k in range(4): E.e(f"v_cvt_pk_bf16_f32 v{50+k}, v{40+2*k}, v{41+2*k}")
        E.e("buffer_store_dwordx2 v[50:51], v4, s[12:15], s25 offen")
        E.e("buffer_store_dwordx2 v[52:53], v4, s[12:15], s25 offen offset:32")
        E.lab("L_rexit"); E.e("s_endpgm")

    def build(self):
        E = self.E
        head = HDR
        head += f"; @launch kernel=attn_main_kernel grid=(256,1,1) block=(512,1,1) lds={LDS_TOTAL}\n"
        head += "; @launch kernel=attn_reduce_kernel grid=(1120,1,1) block=(256,1,1) lds=0\n"
        head += '.amdgcn_target "amdgcn-amd-amdhsa--gfx950"\n'
        self.main_kernel(); self.reduce_kernel()
        tail = ['.section .rodata,"a"']
        for k, nv in (("attn_main_kernel", 256), ("attn_reduce_kernel", 64)):
            tail += [".p2align 6", f".amdhsa_kernel {k}", f"  .amdhsa_next_free_vgpr {nv}", "  .amdhsa_next_free_sgpr 102",
                     f"  .amdhsa_accum_offset {nv}", "  .amdhsa_group_segment_fixed_size 0", "  .amdhsa_kernarg_size 104",
                     "  .amdhsa_user_sgpr_count 2", "  .amdhsa_user_sgpr_kernarg_segment_ptr 1",
                     "  .amdhsa_system_sgpr_workgroup_id_x 1", "  .amdhsa_float_denorm_mode_32 3", ".end_amdhsa_kernel"]
        return head + "\n".join(E.L + tail) + "\n"

def main():
    ap = argparse.ArgumentParser()
    ap.add_argument("-o", default=f"cdna_kernels/{NAME}.s")
    ap.add_argument("--dump", default="")
    ap.add_argument("--stamps", action="store_true")
    ap.add_argument("--order", default="par")
    ap.add_argument("--pst", default="")
    ap.add_argument("--pld", default="")
    ap.add_argument("--s0", type=int, default=1); ap.add_argument("--s1", type=int, default=6)
    ap.add_argument("--s2", type=int, default=8); ap.add_argument("--s3", type=int, default=13)
    opt = ap.parse_args()
    if opt.pst: opt.pst = " " + opt.pst
    if opt.pld: opt.pld = " " + opt.pld
    open(opt.o, "w").write(Gen(opt).build())
if __name__ == "__main__": main()
```

```python
import sys, argparse

NAME = "concat_heads__gqa_block_cached__mha_block_cached__near_ridge"
HDR = open("cdna_kernels/%s.s.ref" % NAME).read().split("; Override launch geometry")[0]

ACC, ACC2, BF, AF = 0, 80, 160, 200
V_LPKV, V_LPWQ, V_LPWO, V_LPVA = 232, 233, 234, 235
V_TR4, V_AK, V_TR2 = 236, 240, 242
V_BA, V_BB, V_BH = 244, 245, 246
V_LANE, V_RW, V_ST = 247, 248, 249
V_T0 = 250
LDS_RING = 81920
LDS_CELL = 147456
LDS_TOTAL = 163840
S_W = 3
S_RING0, S_RING1 = 4, 5
S_C = 6
S_WOPF = 7
S_T0, S_T1, S_T2, S_T3 = 8, 9, 10, 11
S_WB_B, S_WB_A = 12, 13
S_I, S_J = 14, 15
SRD = {}
_s = 16
for ty in "AB":
    for nm in ("X", "WQ", "K", "V", "WO", "P"):
        SRD[ty + nm] = _s; _s += 4
S_PTR = 64
S_ROT = 90
S_JX, S_B = 97, 98
P_OUT, P_DBG, P_WS = S_PTR + 20, S_PTR + 22, S_PTR + 24
PART = 71680

def vr(b, n=4): return f"v[{b}:{b+n-1}]"
def sr(b, n=4): return f"s[{b}:{b+n-1}]"

class Em:
    def __init__(self):
        self.L = []; self.q = []; self.vq = []; self.st = 0
    def e(self, s): self.L.append(s)
    def lab(self, s): self.L.append(s + ":")
    def ds(self, text, dst=(), tag=None):
        self.e(text); self.q.append((set(dst), tag))
    def _wait_idx(self, idx):
        if idx < 0: return
        n = min(len(self.q) - 1 - idx, 15)
        self.e(f"s_waitcnt lgkmcnt({n})")
        self.q = self.q[len(self.q) - n:] if n > 0 else []
    def need(self, regs):
        regs = set(regs); idx = -1
        for i, (d, t) in enumerate(self.q):
            if d & regs: idx = i
        self._wait_idx(idx)
    def need_tag(self, tag):
        idx = -1
        for i, (d, t) in enumerate(self.q):
            if t == tag: idx = i
        self._wait_idx(idx)
    def drain(self):
        self.e("s_waitcnt lgkmcnt(0)"); self.q = []
    def vm(self, text, tag=None):
        self.e(text); self.vq.append(tag)
    def vm_need(self, tag):
        idx = -1
        for i, t in enumerate(self.vq):
            if t == tag: idx = i
        if idx < 0: return
        n = min(len(self.vq) - 1 - idx, 63)
        self.e(f"s_waitcnt vmcnt({n})")
        self.vq = self.vq[len(self.vq) - n:] if n > 0 else []
    def vm_drain(self):
        self.e("s_waitcnt vmcnt(0)"); self.vq = []
    def stmp(self):
        self.st ^= 1
        return S_T0 + self.st

def acc_reg(base, p, e, t): return base + ((p * 2 + e) * 5 + t) * 4

def seg_offsets(seg, k):
    if seg == "WQ": return [(32 * (k & 1) + r) * 8192 for r in (0, 16, 4, 20)]
    if seg == "KB":
        hf, c, p = k >> 3, (k >> 1) & 3, k & 1
        return [(256 * hf + 32 * p + 8 * b) * 512 + c * 128 for b in range(4)]
    if seg == "VB": return [(32 * k + 8 * b) * 512 for b in range(4)]
    if seg == "KA":
        hf, c = k >> 2, k & 3
        return [(256 * hf + 8 * b) * 512 + c * 128 for b in range(4)]
    if seg == "VA": return [(64 * k + 16 * b) * 512 for b in range(4)]
    if seg == "WO": return [(32 * k + 8 * b) * 896 for b in range(4)]
    raise ValueError(seg)
SEG_LP = {"WQ": V_LPWQ, "KB": V_LPKV, "VB": V_LPKV, "KA": V_LPKV, "VA": V_LPVA, "WO": V_LPWO}
SEG_RD = {"WQ": "tr4", "KB": "k", "VB": "tr4", "KA": "k", "VA": "tr2", "WO": "tr4"}
SEG_NT = {"WQ": "", "KB": " nt", "VB": " nt", "KA": " nt", "VA": " nt", "WO": ""}
def seg_srd(ty, seg): return SRD[ty + {"WQ": "WQ", "KB": "K", "KA": "K", "VB": "V", "VA": "V", "WO": "WO"}[seg]]

def round_stream(ty):
    n = 16 if ty == "B" else 8
    return ([(ty, "WQ", k) for k in range(14)] + [(ty, "K" + ty, k) for k in range(n)] +
            [(ty, "V" + ty, k) for k in range(n)] + [(ty, "WO", k) for k in range(16)])

def steps_tr4(nk, acc, seq0=0):
    out = []
    for k in range(nk):
        out.append([(acc_reg(acc, u >> 1, u & 1, t), u, (k, t), k == 0) for t in range(5) for u in range(4)])
    return out

class Gen:
    def __init__(self, opt):
        self.opt = opt; self.E = Em(); self.nst = 0

    def stamp(self):
        if not self.opt.stamps: return
        E = self.E
        E.drain()
        E.e(f"s_memtime s[{S_T2}:{S_T3}]"); E.e("s_waitcnt lgkmcnt(0)")
        E.e(f"v_writelane_b32 v{V_ST}, s{S_T2}, {self.nst}")
        E.e(f"s_memrealtime s[{S_T2}:{S_T3}]"); E.e("s_waitcnt lgkmcnt(0)")
        E.e(f"v_writelane_b32 v{V_ST}, s{S_T2}, {self.nst + 30}")
        self.nst += 1
    def barrier(self, drain=True, stamp=True):
        if drain: self.E.drain()
        self.E.e("s_barrier")
        if stamp: self.stamp()

    def soff(self, pos, off):
        E = self.E
        ty, seg, k = pos
        s = E.stmp()
        if seg == "WQ": E.e(f"s_add_u32 s{s}, s{S_ROT + (k >> 1)}, {off}")
        else: E.e(f"s_mov_b32 s{s}, {off}")
        return s

    def refill(self, n, unit):
        self.refill0(n, unit)
        ui = 2 * n + unit + self.opt.wlag
        key = (ui >> 1, ui & 1)
        if key in self.wsrc:
            for i in range(2): self.reg_load(key[0], key[1], i)
    def plan_w(self):
        self.wsrc = set()
        if not self.opt.wreg: return
        ns = self.opt.wlag + 1
        for n, (ty, seg, k) in enumerate(self.st):
            if seg not in ("WQ", "WO"): continue
            if n < 3: continue
            if seg == "WO" and ty == "A" and k < 2: continue
            for u in range(2):
                if self.opt.wreg == 2 and u == 1: continue
                self.wsrc.add((n, u))
                self.regsrc[(n, u)] = ACC2 + 40 + 8 * ((2 * n + u) % ns)
    def refill0(self, n, unit):
        E = self.E
        if n >= len(self.st): return
        pos = self.st[n]; ty, seg, k = pos
        half = n & 1
        if (n, unit) in self.regsrc:
            r = self.regsrc[(n, unit)]
            E.vm_need(("R", n, unit))
            for i in range(2):
                E.ds(f"ds_write_b128 v{V_RW}, {vr(r + 4*i)} offset:{half*4096 + (2*unit+i)*1024}")
            return
        E.need_tag(("A", unit))
        offs = seg_offsets(seg, k)
        E.e(f"s_mov_b32 m0, s{S_RING0 + half}")
        for b in (2 * unit, 2 * unit + 1):
            s = self.soff(pos, offs[b] - 1024 * b)
            off = f" offset:{1024*b}" if b else ""
            E.vm(f"buffer_load_dwordx4 v{SEG_LP[seg]}, {sr(seg_srd(ty, seg))}, s{s} offen{off}{' nt' if n < self.opt.wqnt else SEG_NT[seg]} lds", ("D", n, unit))
    def reg_load(self, n, unit, i):
        E = self.E
        pos = self.st[n]; ty, seg, k = pos
        r = self.regsrc[(n, unit)] + 4 * i
        s = self.soff(pos, seg_offsets(seg, k)[2 * unit + i])
        E.vm(f"buffer_load_dwordx4 {vr(r)}, v{SEG_LP[seg]}, {sr(seg_srd(ty, seg))}, s{s} offen{SEG_NT[seg]}", ("R", n, unit))
    def a_reads(self, n, unit):
        E = self.E
        if n >= len(self.st): return
        E.vm_need(("D", n, unit))
        rd = SEG_RD[self.st[n][1]]
        half = n & 1
        af = AF + half * 16
        base = half * 4096 + unit * 2048
        tag = ("A", unit)
        if rd == "tr4":
            for u in range(4):
                d = af + u * 4 + 2 * unit
                E.ds(f"ds_read_b64_tr_b16 {vr(d,2)}, v{V_TR4+u} offset:{base}", (d, d + 1), tag)
        elif rd == "k":
            for e in range(2):
                d = af + (unit * 2 + e) * 4
                E.ds(f"ds_read_b128 {vr(d)}, v{V_AK+e} offset:{base}", range(d, d + 4), tag)
        else:
            for tp in range(2):
                for h in range(2):
                    d = af + (tp * 2 + unit) * 4 + 2 * h
                    E.ds(f"ds_read_b64_tr_b16 {vr(d,2)}, v{V_TR2+tp} offset:{base + h*1024}", (d, d + 1), tag)

    def gemm(self, n0, steps, baddr, hooks=None, fence=None, pre=None, ns=10):
        E = self.E; opt = self.opt
        hooks = hooks or {}
        flat = [m for s in steps for m in s]
        loads = []; last = {}; slot = {}
        for i, (acc, aidx, bkey, first) in enumerate(flat):
            if bkey not in slot:
                slot[bkey] = len(loads) % ns; loads.append(bkey)
            last[bkey] = i
        nxt = [0]
        def can(gi):
            k = nxt[0]
            if k >= len(loads): return False
            if fence and k >= fence[0] and fence[1] not in self.flags: return False
            return k < ns or last[loads[k - ns]] <= gi
        def issue_b():
            k = loads[nxt[0]]; d = BF + slot[k] * 4
            v, off = baddr(k)
            E.ds(f"ds_read_b128 {vr(d)}, v{v} offset:{off}", range(d, d + 4), "B")
            nxt[0] += 1
        while can(-1): issue_b()
        if pre: pre()
        gi = 0
        for hs, ms in enumerate(steps):
            n = n0 + hs
            sc = len(ms) // 20
            sites = {opt.s0 * sc: ("rd", 0), opt.s1 * sc: ("rf", 0), opt.s2 * sc: ("rd", 1), opt.s3 * sc: ("rf", 1)}
            for mi, (acc, aidx, bkey, first) in enumerate(ms):
                a = AF + (n & 1) * 16 + aidx * 4
                b = BF + slot[bkey] * 4
                assert loads.index(bkey) < nxt[0], "B frag not loaded (fence too late)"
                E.need(list(range(a, a + 4)) + list(range(b, b + 4)))
                c = "0" if first else vr(acc)
                E.e(f"v_mfma_f32_16x16x32_bf16 {vr(acc)}, {vr(a)}, {vr(b)}, {c}")
                for h in hooks.get(gi, ()): h()
                nb = 0
                while can(gi) and nb < 3: issue_b(); nb += 1
                if mi in sites:
                    what, unit = sites[mi]
                    if what == "rd": self.a_reads(n + 1, unit)
                    else: self.refill(n + 3, unit)
                gi += 1
        E.e("s_nop 7")

    def ba_g(self, frag):
        return (V_BA, frag * 1024) if frag < 40 else (V_BB, (frag - 40) * 1024)

    XR = ACC2
    def x_load(self, ty):
        E = self.E; t0 = V_T0
        E.e(f"v_lshrrev_b32 v{t0}, 2, v{V_LANE}")
        E.e(f"v_mul_u32_u24 v{t0}, 896, v{t0}")
        E.e(f"v_and_b32 v{t0+1}, 3, v{V_LANE}")
        E.e(f"v_lshl_add_u32 v{t0}, v{t0+1}, 4, v{t0}")
        for t in range(5):
            s = E.stmp()
            E.e(f"s_mov_b32 s{s}, {t*14336}")
            for sp in range(2):
                d = self.XR + (sp * 5 + t) * 4
                off = " offset:64" if sp else ""
                E.vm(f"buffer_load_dwordx4 {vr(d)}, v{t0}, {sr(SRD[ty+'X'])}, s{s} offen{off}{self.opt.xnt}", "X")
    def x_addr(self, t0):
        E = self.E
        E.e(f"v_lshrrev_b32 v{t0}, 2, v{V_LANE}")
        E.e(f"v_and_b32 v{t0+1}, 3, v{V_LANE}")
        E.e(f"v_lshlrev_b32 v{t0+2}, 1, v{t0+1}")
        E.e(f"v_xor_b32 v{t0}, v{t0}, v{t0+2}")
        E.e(f"v_lshl_add_u32 v{t0}, v{t0+1}, 4, v{t0}")
        E.e(f"v_lshlrev_b32 v{t0}, 4, v{t0}")
        E.e(f"v_add_u32 v{t0}, s{S_WB_B}, v{t0}")
    def x_write1(self, t0, f):
        self.E.vm_need("X")
        self.E.ds(f"ds_write_b128 v{t0}, {vr(self.XR+f*4)} offset:{f*1024}")

    def q_addr(self):
        E = self.E; t0 = V_T0
        for up in range(2):
            E.e(f"v_lshrrev_b32 v{t0+2}, 5, v{V_LANE}")
            E.e(f"v_add_u32 v{t0+2}, {2*up}, v{t0+2}")
            E.e(f"v_lshlrev_b32 v{t0+3}, 1, v{t0+2}")
            E.e(f"v_and_b32 v{t0+4}, 15, v{V_LANE}")
            E.e(f"v_xor_b32 v{t0+3}, v{t0+4}, v{t0+3}")
            E.e(f"v_lshl_add_u32 v{t0+3}, v{t0+2}, 4, v{t0+3}")
            E.e(f"v_lshlrev_b32 v{t0+3}, 4, v{t0+3}")
            E.e(f"v_bfe_u32 v{t0+4}, v{V_LANE}, 4, 1")
            E.e(f"v_lshl_add_u32 v{t0+3}, v{t0+4}, 3, v{t0+3}")
            E.e(f"v_add_u32 v{t0+up}, s{S_WB_B}, v{t0+3}")
    def q_write(self):
        E = self.E; t0 = V_T0
        for t in range(5):
            for p in range(2):
                for e in range(2):
                    a = acc_reg(ACC, p, e, t)
                    E.e(f"v_cvt_pk_bf16_f32 v{a}, v{a}, v{a+1}")
                    E.e(f"v_cvt_pk_bf16_f32 v{a+1}, v{a+2}, v{a+3}")
                    E.ds(f"ds_write_b64 v{t0+e}, {vr(a,2)} offset:{(p*5+t)*1024}")

    def groups(self, ty):
        if ty == "B": return [[(0, t), (1, t)] for t in range(5)]
        return [[(p, t)] for p in range(2) for t in range(5)]
    def stat_write(self, ty, op, regs, region, tmp, va):
        E = self.E
        stride = 16 if ty == "B" else 32
        E.e(f"v_mul_u32_u24 v{va}, {stride}, v{V_LANE}")
        if ty == "B":
            E.e(f"s_lshl_b32 s{S_T2}, s{S_I}, 11"); E.e(f"s_lshl_b32 s{S_T3}, s{S_J}, 2"); E.e(f"s_add_u32 s{S_T2}, s{S_T2}, s{S_T3}")
        else:
            E.e(f"s_lshl_b32 s{S_T2}, s{S_W}, 2")
        E.e(f"s_add_u32 s{S_T2}, s{S_T2}, {LDS_CELL + region*6144}")
        E.e(f"v_add_u32 v{va}, s{S_T2}, v{va}")
        quads = [regs[i:i + 4] for i in range(0, len(regs), 4)]
        lastq = quads[-1]
        if len(lastq) == 1: E.e(f"v_mov_b32 v{tmp}, v{lastq[0]}")
        E.e("s_nop 1")
        l1 = []
        for q in quads:
            if len(q) == 4: prs = [(q[0], q[2]), (q[1], q[3])]
            elif len(q) == 2: prs = [(q[0], q[1])]
            else: prs = [(q[0], tmp)]
            for (x, y) in prs: E.e(f"v_permlane32_swap_b32 v{x}, v{y}")
            l1.append(prs)
        for prs in l1:
            for (x, y) in prs: E.e(f"{op} v{x}, v{x}, v{y}")
        E.e(f"v_mov_b32 v{tmp}, v{lastq[0]}")
        E.e("s_nop 1")
        l2 = []
        for prs in l1:
            pr = (prs[0][0], prs[1][0]) if len(prs) == 2 else (prs[0][0], tmp)
            E.e(f"v_permlane16_swap_b32 v{pr[0]}, v{pr[1]}")
            l2.append(pr)
        for (x, y) in l2: E.e(f"{op} v{x}, v{x}, v{y}")
        for k, (x, y) in enumerate(l2):
            E.ds(f"ds_write_b32 v{va}, v{x} offset:{k*64*stride}")
    def stat_read(self, ty, op3, op, regs, region, tmps, va):
        E = self.E
        stride = 16 if ty == "B" else 32
        E.e(f"v_and_b32 v{va}, 15, v{V_LANE}")
        E.e(f"v_mul_u32_u24 v{va}, {stride}, v{va}")
        if ty == "B":
            E.e(f"s_lshl_b32 s{S_T2}, s{S_I}, 11"); E.e(f"s_add_u32 s{S_T2}, s{S_T2}, {LDS_CELL + region*6144}")
        else:
            E.e(f"s_mov_b32 s{S_T2}, {LDS_CELL + region*6144}")
        E.e(f"v_add_u32 v{va}, s{S_T2}, v{va}")
        n = len(regs)
        slot = list(range(n))
        if n == 10: slot[9] = 10
        per = stride // 16
        nb = len(tmps) // per
        def rd(g):
            for h in range(per):
                d = tmps[(g % nb) * per + h]
                E.ds(f"ds_read_b128 {vr(d)}, v{va} offset:{slot[g]*16*stride + h*16}", range(d, d + 4))
        for g in range(min(nb, n)): rd(g)
        for g in range(n):
            vals = [tmps[(g % nb) * per + h] + k for h in range(per) for k in range(4)]
            E.need(vals)
            if op3:
                E.e(f"{op} v{regs[g]}, v{vals[0]}, v{vals[1]}")
                for k in range(2, len(vals), 2): E.e(f"{op3} v{regs[g]}, v{regs[g]}, v{vals[k]}, v{vals[k+1]}")
            else:
                m = len(vals)
                while m > 2:
                    for k in range(m // 2): E.e(f"{op} v{vals[k]}, v{vals[k]}, v{vals[k + m//2]}")
                    m //= 2
                E.e(f"{op} v{regs[g]}, v{vals[0]}, v{vals[1]}")
            if g + nb < n: rd(g + nb)
    def wr_addr(self, ty, dst):
        self.E.e(f"v_add_u32 v{dst}, s{S_WB_B if ty == 'B' else S_WB_A}, v{V_BA}")
    def wr_off(self, ty, p, t): return (p * 5 + t) * 1024 if ty == "B" else (p * 40 + t) * 1024
    def pack(self, base, p, t):
        E = self.E
        a = acc_reg(base, p, 0, t); b = acc_reg(base, p, 1, t)
        E.e(f"v_cvt_pk_bf16_f32 v{a}, v{a}, v{a+1}")
        E.e(f"v_cvt_pk_bf16_f32 v{a+1}, v{a+2}, v{a+3}")
        E.e(f"v_cvt_pk_bf16_f32 v{a+2}, v{b}, v{b+1}")
        E.e(f"v_cvt_pk_bf16_f32 v{a+3}, v{b+2}, v{b+3}")
        return a

    def m_regs(self, ty):
        if ty == "B": return [V_T0 + i for i in range(5)]
        return [BF + 32 + i for i in range(8)] + [V_T0 + 3, V_T0 + 4]
    def max_thunks(self, ty, base, init):
        E = self.E
        G = self.groups(ty); M = self.m_regs(ty)
        mem = [[acc_reg(base, p, e, t) + r for (p, t) in pts for e in range(2) for r in range(4)] for pts in G]
        out = []
        for k in range(0, len(mem[0]), 2):
            for gi in range(len(G)):
                if k == 0 and init: out.append(f"v_max_f32 v{M[gi]}, v{mem[gi][0]}, v{mem[gi][1]}")
                else: out.append(f"v_max3_f32 v{M[gi]}, v{M[gi]}, v{mem[gi][k]}, v{mem[gi][k+1]}")
        return out
    def exp_frag(self, base, p, t, m, ts, acc_sum, first):
        regs = [acc_reg(base, p, e, t) + r for e in range(2) for r in range(4)]
        o = [f"v_fma_f32 v{r}, v{r}, s{S_C}, -v{m}" for r in regs]
        o += [f"v_exp_f32 v{r}, v{r}" for r in regs]
        o.append(f"v_pk_add_f32 {vr(ts,2)}, {vr(regs[0],2)}, {vr(regs[2],2)}")
        o.append(f"v_pk_add_f32 {vr(ts+2,2)}, {vr(regs[4],2)}, {vr(regs[6],2)}")
        a, b = regs[0], regs[4]
        o += [f"v_cvt_pk_bf16_f32 v{a}, v{a}, v{a+1}", f"v_cvt_pk_bf16_f32 v{a+1}, v{a+2}, v{a+3}",
              f"v_cvt_pk_bf16_f32 v{a+2}, v{b}, v{b+1}", f"v_cvt_pk_bf16_f32 v{a+3}, v{b+2}, v{b+3}"]
        kind, s = acc_sum
        if kind == "pair":
            if first: o.append(f"v_pk_add_f32 {vr(s,2)}, {vr(ts,2)}, {vr(ts+2,2)}")
            else:
                o.append(f"v_pk_add_f32 {vr(ts,2)}, {vr(ts,2)}, {vr(ts+2,2)}")
                o.append(f"v_pk_add_f32 {vr(s,2)}, {vr(s,2)}, {vr(ts,2)}")
        else:
            o.append(f"v_pk_add_f32 {vr(ts,2)}, {vr(ts,2)}, {vr(ts+2,2)}")
            o.append(f"v_add_f32 v{s}, v{s}, v{ts}")
            o.append(f"v_add_f32 v{s}, v{s}, v{ts+1}")
        return o
    def softmax(self, ty, touch):
        E = self.E; opt = self.opt
        G = self.groups(ty); ng = len(G)
        M = self.m_regs(ty)
        for i in self.max_thunks(ty, ACC2, False): E.e(i)
        self.stat_write(ty, "v_max_f32", M, 0, AF + 16, AF + 17)
        self.barrier()
        tm = [BF + 4 * k for k in range(8)]
        self.stat_read(ty, "v_max3_f32", "v_max_f32", M, 0, tm, AF + 17)
        for gi in range(ng): E.e(f"v_mul_f32 v{M[gi]}, s{S_C}, v{M[gi]}")
        gof = {pt: gi for gi, pts in enumerate(G) for pt in pts}
        VS = BF
        TS = AF + 20
        vw = AF + 16
        self.wr_addr(ty, vw)
        started = set()
        fr = [(p, t) for p in range(2) for t in range(5)]
        for i, (p, t) in enumerate(fr):
            gi = gof[(p, t)]
            for ins in self.exp_frag(ACC, p, t, M[gi], TS + 4 * (i & 1), ("pair", VS + 2 * gi), gi not in started): E.e(ins)
            started.add(gi)
            E.ds(f"ds_write_b128 v{vw}, {vr(acc_reg(ACC,p,0,t))} offset:{self.wr_off(ty,p,t)}")
            if i == opt.tfrag: touch()
        nex = opt.nex if ty == "A" else max(opt.nex - 1, 3)
        for i, (p, t) in enumerate(fr[:nex]):
            gi = gof[(p, t)]
            for ins in self.exp_frag(ACC2, p, t, M[gi], TS + 4 * (i & 1), ("pair", VS + 2 * gi), False): E.e(ins)
        freed = [acc_reg(ACC2, p, 1, t) for (p, t) in fr[:nex]]
        ts2 = freed[0]
        pool = [q + k for q in freed[1:] for k in range(4)]
        S = pool[:ng]; spare = pool[ng:]
        assert len(S) == ng and len(spare) >= 2
        for gi in range(ng): E.e(f"v_add_f32 v{S[gi]}, v{VS+2*gi}, v{VS+2*gi+1}")
        self.barrier()
        hid = []
        for (p, t) in fr[nex:]:
            gi = gof[(p, t)]
            hid += self.exp_frag(ACC2, p, t, M[gi], ts2, ("scalar", S[gi]), False)
        def fin(): self.stat_write(ty, "v_add_f32", S, 1, spare[0], spare[1])
        return hid, fin, ts2

    def o_write(self, ty):
        E = self.E
        G = self.groups(ty); ng = len(G)
        VS = BF
        vw = V_T0 + 1
        self.wr_addr(ty, vw)
        tm = [BF + 12 + 4 * k for k in range(4)] + [AF + 16 + 4 * k for k in range(4)]
        self.stat_read(ty, None, "v_add_f32", [VS + gi for gi in range(ng)], 1, tm, V_T0 + 2)
        for gi in range(ng): E.e(f"v_rcp_f32 v{VS+gi}, v{VS+gi}")
        E.e("s_nop 0")
        for gi, pts in enumerate(G):
            for (p, t) in pts:
                regs = [acc_reg(ACC, p, e, t) + r for e in range(2) for r in range(4)]
                for r in regs: E.e(f"v_mul_f32 v{r}, v{r}, v{VS+gi}")
                d = self.pack(ACC, p, t)
                E.ds(f"ds_write_b128 v{vw}, {vr(d)} offset:{self.wr_off(ty,p,t)}")

    def part_store(self, ty):
        E = self.E
        va = V_T0 + 3
        E.e(f"v_lshlrev_b32 v{va}, 4, v{V_LANE}")
        for p in range(2):
            for t in range(5):
                d = self.pack(ACC, p, t)
                s = E.stmp()
                E.e(f"s_mov_b32 s{s}, {(p*5+t)*1024}")
                E.vm(f"buffer_store_dwordx4 {vr(d)}, v{va}, {sr(SRD[ty+'P'])}, s{s} offen {self.opt.pst}", "ST")
        E.e("s_nop 1")

    def signal(self, ty, lab):
        E = self.E
        br = 0 if ty == "A" else 1
        E.e(f"s_cmp_lg_u32 s{S_W}, 0"); E.e(f"s_cbranch_scc1 {lab}")
        E.e(f"s_lshl_b32 s{S_T2}, s{S_B}, 2")
        E.e(f"v_mov_b32 v{V_T0+3}, s{S_T2}"); E.e(f"v_mov_b32 v{V_T0+4}, 1")
        E.e("s_mov_b64 exec, 1")
        E.e(f"global_atomic_add v{V_T0+3}, v{V_T0+4}, s[{P_DBG}:{P_DBG+1}] offset:{br*128} sc1")
        E.e("s_mov_b64 exec, -1")
        E.lab(lab)

    def early_barrier(self):
        self.E.need_tag("B"); self.E.e("s_barrier")

    def round(self, ty, n0, first, other):
        E = self.E; opt = self.opt
        last = not first
        nk = 16 if ty == "B" else 8
        nK = n0 + 14
        hooks = {}
        def add(idx, f): hooks.setdefault(idx, []).append(f)
        pend = self.kpend
        for i, (n, u, b) in enumerate(pend):
            idx = opt.kq0 + (i // opt.kb) * opt.kqs
            if opt.kbar and i % opt.kb == 0: add(idx, lambda: E.e("s_barrier"))
            add(idx, (lambda n=n, u=u, b=b: self.reg_load(n, u, b)))
        if opt.wbar:
            for hs in range(opt.wbar, 12, opt.wbar): add(hs * 20 + opt.wbo, lambda: E.e("s_barrier"))
        add(280 - 60, self.q_addr)
        add(280 - opt.eb, self.early_barrier)
        if last:
            add(100, lambda: E.vm_need("ST"))
        pre = (lambda: self.part_store(other)) if last else None
        self.gemm(n0, steps_tr4(14, ACC), lambda k: self.ba_g(k[0] * 5 + k[1]), hooks, pre=pre)
        self.stamp()
        self.q_write()
        self.barrier()
        if last: self.signal(other, f"L_sig{self.prog}a")
        if first and opt.wpf:
            E.e(f"v_and_b32 v{V_T0}, 15, v{V_LANE}")
            E.e(f"v_mul_u32_u24 v{V_T0}, 896, v{V_T0}")
            for t2 in "AB": E.vm(f"buffer_load_dword v255, v{V_T0}, {sr(SRD[t2+'WO'])}, s{S_WOPF} offen", "T")
        steps = []
        if ty == "B":
            for k in range(16):
                hf, c, p = k >> 3, (k >> 1) & 3, k & 1
                acc = ACC if hf == 0 else ACC2
                steps.append([(acc_reg(acc, p, u, t), u * 2 + e, (hf, (2 * c + e) * 5 + t), c == 0 and e == 0)
                              for e in range(2) for t in range(5) for u in range(2)])
            ba = lambda k: (V_BH, k[1] * 1024)
        else:
            for k in range(8):
                h, c = k >> 2, k & 3
                acc = ACC if h == 0 else ACC2
                steps.append([(acc_reg(acc, i, u, t), u * 2 + e, (h, i * 40 + (2 * c + e) * 5 + t), c == 0 and e == 0)
                              for e in range(2) for i in range(2) for t in range(5) for u in range(2)])
            ba = lambda k: self.ba_g(k[1])
        hooks = {}
        def spread(ins, i0, i1):
            n = len(ins)
            for k, x in enumerate(ins):
                add(i0 + (k * (i1 - i0)) // n, (lambda x=x: E.e(x)) if isinstance(x, str) else x)
        spread(self.max_thunks(ty, ACC, True), 175, 255)
        if opt.pre and first:
            def pre_st(f, t2):
                if f == 0: E.e(f"v_lshlrev_b32 v{V_RW}, 4, v{V_LANE}")
                s_ = E.stmp(); E.e(f"s_mov_b32 s{s_}, {f*1024}")
                E.vm(f"buffer_store_dwordx4 {vr(V_TR4)}, v{V_RW}, {sr(SRD[t2+'P'])}, s{s_} offen sc1", "PRE")
            for f in range(10): add(10 + f * 14, (lambda f=f: pre_st(f, other)))
            if opt.pre > 1:
                for f in range(10): add(17 + f * 14, (lambda f=f: pre_st(f + 0, ty)))
        self.gemm(nK, steps, ba, hooks, ns=10 if ty == "B" else 8)
        self.stamp()
        def touch():
            if not opt.vt: return
            E.e(f"v_lshlrev_b32 v{AF+18}, 9, v{V_LANE}")
            for i in range(opt.vt):
                s_ = E.stmp()
                if ty == "B": E.e(f"s_mov_b32 s{s_}, {(96 + 64*i)*512}")
                else:
                    E.e(f"s_and_b32 s{s_}, s{S_W}, 1"); E.e(f"s_lshl_b32 s{s_}, s{s_}, 15"); E.e(f"s_add_u32 s{s_}, s{s_}, {(192 + 128*i)*512}")
                E.vm(f"buffer_load_dword v255, v{AF+18}, {sr(SRD[ty+'V'])}, s{s_} offen nt", "T")
        hid, fin, vw = self.softmax(ty, touch)
        nV = nK + nk
        steps = []
        if ty == "B":
            for k in range(16):
                steps.append([(acc_reg(ACC, u >> 1, u & 1, t), u, (k >> 3, (k & 7) * 5 + t), k == 0) for t in range(5) for u in range(4)])
            nb_half = 40; look = 32
        else:
            for k in range(8):
                hf, c = k >> 2, k & 3
                steps.append([(acc_reg(ACC, i, u, t), u * 2 + e, (hf, i * 40 + (2 * c + e) * 5 + t), k == 0 and e == 0)
                              for e in range(2) for i in range(2) for t in range(5) for u in range(2)])
            nb_half = 80; look = 16
        hooks = {}
        self.flags.discard("p2")
        e0 = 160 - look + look // 4
        spread(hid, 2, e0 - 14)
        add(e0 - 12, fin)
        add(e0 - 2, lambda: self.wr_addr(ty, vw))
        add(e0, self.early_barrier)
        span = look - look // 4 - 2
        fr = [(p, t) for p in range(2) for t in range(5)]
        for i, (p, t) in enumerate(fr):
            add(e0 + (i * (span // 2)) // 10, (lambda p=p, t=t: E.ds(f"ds_write_b128 v{vw}, {vr(acc_reg(ACC2,p,0,t))} offset:{self.wr_off(ty,p,t)}", (), "W")))
        def bar2():
            E.need_tag("W"); E.e("s_barrier"); self.flags.add("p2")
        add(e0 + span, bar2)
        add(320 - look + look // 4, self.early_barrier)
        if first:
            add(200, lambda: self.x_load(other))
        else:
            add(200, self.reduce_setup)
            add(240, lambda: self.flag_load(other))
        self.gemm(nV, steps, ba, hooks, fence=(nb_half, "p2"), ns=8)
        self.stamp()
        self.o_write(ty)
        self.barrier()
        nO = nV + nk
        hooks = {}
        if opt.wbar:
            for hs in range(opt.wbar, 16 if last else 14, opt.wbar): add(hs * 20 + opt.wbo, lambda: E.e("s_barrier"))
        if first:
            nxtK = nO + 16 + 14
            self.plan_k(other, nxtK, opt.kreg2)
            early = self.kall[:opt.kearly2]; self.kpend = self.kall[opt.kearly2:]
            for i, (n, u, b) in enumerate(early):
                add(opt.ko0 + i * opt.kos, (lambda n=n, u=u, b=b: self.reg_load(n, u, b)))
            add(320 - 60, lambda: self.x_addr(V_T0))
            add(320 - 30, self.early_barrier)
            for f in range(10): add(320 - 30 + f, (lambda f=f: self.x_write1(V_T0, f)))
        else:
            add(30, lambda: self.flag_check(other, f"L_f{self.prog}"))
            if opt.rl_at: add(opt.rl_at, lambda: self.red_loads(other, f"L_r{self.prog}1"))
        self.gemm(nO, steps_tr4(16, ACC), lambda k: self.ba_g(k[0] * 5 + k[1]), hooks)
        if first: self.barrier()
        else: self.stamp()
        return nO + 16

    def plan_k(self, ty, nK, nu):
        if ty == "B": units = [(nK + k, 0) for k in range(10)]
        else: units = [(nK + k, 0) for k in range(7)] + [(nK + k, 1) for k in (4, 5, 6)]
        units = sorted(units)[:nu] if ty == "B" else sorted(units[:nu])
        self.kall = []
        for i, (n, u) in enumerate(units):
            self.regsrc[(n, u)] = ACC2 + 40 + 8 * i if i < 5 else ACC2 + 8 * (i - 5)
            self.kall += [(n, u, 0), (n, u, 1)]

    RO = 112
    def poll(self, ty, lab, allw):
        E = self.E
        br = 0 if ty == "A" else 1
        if not allw:
            E.e(f"s_cmp_lg_u32 s{S_W}, 0"); E.e(f"s_cbranch_scc1 {lab}go")
        E.e(f"s_lshl_b32 s{S_T2}, s{S_B}, 2")
        E.e(f"v_mov_b32 v116, s{S_T2}")
        E.lab(f"{lab}poll")
        E.e(f"global_load_dword v117, v116, s[{P_DBG}:{P_DBG+1}] offset:{br*128} sc1")
        E.e("s_waitcnt vmcnt(0)")
        E.e(f"v_readfirstlane_b32 s{S_T2}, v117")
        E.e("s_nop 3")
        E.e(f"s_cmp_ge_u32 s{S_T2}, 8")
        E.e(f"s_cbranch_scc1 {lab}go")
        E.e("s_sleep 1")
        E.e(f"s_branch {lab}poll")
        E.lab(f"{lab}go")
        if not allw: E.e("s_barrier")
    def flag_load(self, ty):
        E = self.E
        br = 0 if ty == "A" else 1
        E.e(f"s_lshl_b32 s{S_T2}, s{S_B}, 2")
        E.e(f"v_mov_b32 v116, s{S_T2}")
        E.vm(f"global_load_dword v117, v116, s[{P_DBG}:{P_DBG+1}] offset:{br*128} sc1", "F")
    def flag_check(self, ty, lab):
        E = self.E
        E.vm_need("F")
        E.e(f"v_readfirstlane_b32 s{S_T2}, v117")
        E.e("s_nop 3")
        E.e(f"s_cmp_ge_u32 s{S_T2}, 8")
        E.e(f"s_cbranch_scc1 {lab}go")
        self.poll(ty, lab, True)
    def red_loads(self, ty, lab):
        E = self.E
        br = 0 if ty == "A" else 1
        E.e(f"s_add_u32 s{S_T2}, s{S_B}, {br*32}"); E.e(f"s_mul_i32 s{S_T2}, s{S_T2}, {8*PART}")
        E.e(f"s_add_u32 s16, s{P_WS}, s{S_T2}"); E.e(f"s_addc_u32 s17, s{P_WS+1}, 0"); E.e(f"s_mov_b32 s18, {8*PART}"); E.e("s_mov_b32 s19, 0x20000")
        for ps in (1, 0):
            base = 120 if ps == 0 else 80
            if ps == 1:
                E.e(f"s_cmp_lg_u32 s{S_W}, 7"); E.e(f"s_cbranch_scc1 {lab}p1")
            E.e(f"s_mov_b32 s{S_T2}, 0")
            for j in range(8):
                t = f"buffer_load_dwordx4 {vr(base+4*j)}, v{self.RO+ps}, s[16:19], s{S_T2} offen sc1"
                if ps == 1: E.e(t)
                else: E.vm(t, ("RL", j))
                if j < 7: E.e(f"s_add_u32 s{S_T2}, s{S_T2}, {PART}")
            if ps == 1: E.lab(f"{lab}p1")
    def red_sum(self, ty, lab):
        E = self.E
        br = 0 if ty == "A" else 1
        A = BF
        for ps in (1, 0):
            base = 120 if ps == 0 else 80
            if ps == 1:
                E.vm_need(("RL", 0))
                E.e(f"s_cmp_lg_u32 s{S_W}, 7"); E.e(f"s_cbranch_scc1 {lab}p2")
            for j in range(8):
                if ps == 0: E.vm_need(("RL", j))
                for k in range(4):
                    r = base + 4 * j + k
                    o = 0 if j == 0 else 8
                    E.e(f"v_lshlrev_b32 v{A+o+2*k}, 16, v{r}"); E.e(f"v_and_b32 v{A+o+1+2*k}, 0xffff0000, v{r}")
                if j:
                    for k in range(4): E.e(f"v_pk_add_f32 {vr(A+2*k,2)}, {vr(A+2*k,2)}, {vr(A+8+2*k,2)}")
            d = A + 16 + 4 * ps
            for k in range(4): E.e(f"v_cvt_pk_bf16_f32 v{d+k}, v{A+2*k}, v{A+1+2*k}")
            for h in range(2):
                t = f"buffer_store_dwordx2 {vr(d+2*h,2)}, v{self.RO+2+ps}, s[20:23], 0 offen offset:{br*896+32*h}"
                if ps == 1: E.e(t)
                else: E.vm(t, "OS")
            if ps == 1: E.lab(f"{lab}p2")

    def reduce_setup(self):
        E = self.E; R = self.RO
        E.e(f"s_mul_i32 s{S_T2}, s{S_B}, {80*1792}")
        E.e(f"s_add_u32 s20, s{P_OUT}, s{S_T2}"); E.e(f"s_addc_u32 s21, s{P_OUT+1}, 0"); E.e(f"s_mov_b32 s22, {80*1792}"); E.e("s_mov_b32 s23, 0x20000")
        E.e(f"s_mul_i32 s{S_T2}, s{S_JX}, 560")
        E.e(f"s_lshl_b32 s{S_T3}, s{S_W}, 6"); E.e(f"s_add_u32 s{S_T3}, s{S_T3}, s{S_T2}")
        E.e(f"s_add_u32 s{S_T2}, s{S_T2}, 512")
        E.e(f"v_add_u32 v104, s{S_T3}, v{V_LANE}")
        E.e(f"v_add_u32 v105, s{S_T2}, v{V_LANE}")
        for ps in range(2):
            it = 104 + ps
            E.e(f"v_lshlrev_b32 v{R+ps}, 4, v{it}")
            E.e(f"v_lshrrev_b32 v106, 6, v{it}")
            E.e(f"v_mul_u32_u24 v107, 205, v106"); E.e("v_lshrrev_b32 v107, 10, v107")
            E.e(f"v_mul_u32_u24 v108, 5, v107"); E.e("v_sub_u32 v108, v106, v108")
            E.e(f"v_and_b32 v109, 15, v{it}")
            E.e("v_lshl_add_u32 v108, v108, 4, v109")
            E.e("v_mul_u32_u24 v108, 1792, v108")
            E.e("v_lshl_add_u32 v108, v107, 6, v108")
            E.e(f"v_bfe_u32 v109, v{it}, 4, 2")
            E.e(f"v_lshl_add_u32 v{R+2+ps}, v109, 3, v108")
        E.e(f"v_cmp_gt_u32 vcc, 48, v{V_LANE}")
        E.e("v_mov_b32 v106, 0x7ff00000")
        E.e("s_nop 1")
        E.e(f"v_cndmask_b32 v{R+1}, v106, v{R+1}, vcc")
        E.e(f"v_cndmask_b32 v{R+3}, v106, v{R+3}, vcc")

    def srd(self, name, ptr, off_s, total, zero_w7=False):
        E = self.E; d = SRD[name]
        E.e(f"s_add_u32 s{d}, s{S_PTR+2*ptr}, s{off_s}")
        E.e(f"s_addc_u32 s{d+1}, s{S_PTR+2*ptr+1}, 0")
        E.e(f"s_sub_u32 s{d+2}, {total}, s{off_s}")
        E.e(f"s_mov_b32 s{d+3}, 0x20000")
        if zero_w7:
            E.e(f"s_cmp_eq_u32 s{S_W}, 7")
            E.e(f"s_cselect_b32 s{d+2}, 0, s{d+2}")

    def setup(self):
        E = self.E
        E.e("s_cmp_ge_u32 s2, 256"); E.e("s_cbranch_scc1 L_exit")
        if self.opt.half:
            E.e(f"s_and_b32 s3, s2, {self.opt.half}"); E.e("s_cmp_lg_u32 s3, 0"); E.e("s_cbranch_scc1 L_exit")
        E.e(f"s_load_dwordx16 s[{S_PTR}:{S_PTR+15}], s[0:1], 0")
        E.e(f"s_load_dwordx8 s[{S_PTR+16}:{S_PTR+23}], s[0:1], 64")
        E.e(f"s_load_dwordx2 s[{S_PTR+24}:{S_PTR+25}], s[0:1], 96")
        E.e(f"v_lshrrev_b32 v1, 6, v0")
        E.e(f"v_and_b32 v{V_LANE}, 63, v0")
        E.e(f"v_readfirstlane_b32 s{S_W}, v1")
        L = V_LANE
        E.e(f"v_and_b32 v1, 7, v{L}")
        E.e(f"v_lshrrev_b32 v2, 4, v{L}")
        E.e(f"v_lshlrev_b32 v3, 1, v2")
        E.e(f"v_xor_b32 v1, v1, v3")
        E.e(f"v_lshlrev_b32 v1, 4, v1")
        E.e(f"v_lshrrev_b32 v4, 3, v{L}")
        E.e(f"v_lshl_add_u32 v{V_LPKV}, v4, 9, v1")
        E.e(f"v_mul_u32_u24 v5, 896, v4")
        E.e(f"v_add_u32 v{V_LPWO}, v5, v1")
        E.e(f"v_and_b32 v5, 3, v4")
        E.e(f"v_lshrrev_b32 v6, 2, v4")
        E.e(f"v_lshl_add_u32 v5, v6, 3, v5")
        E.e(f"v_lshl_add_u32 v{V_LPWQ}, v5, 13, v1")
        E.e(f"v_and_b32 v5, 3, v{L}")
        E.e(f"v_and_b32 v6, 2, v3")
        E.e(f"v_xor_b32 v5, v5, v6")
        E.e(f"v_lshlrev_b32 v5, 4, v5")
        E.e(f"v_lshrrev_b32 v6, 2, v{L}")
        E.e(f"v_lshl_add_u32 v{V_LPVA}, v6, 9, v5")
        E.e(f"s_lshl_b32 s{S_RING0}, s{S_W}, 13")
        E.e(f"s_add_u32 s{S_RING0}, s{S_RING0}, {LDS_RING}")
        E.e(f"s_add_u32 s{S_RING1}, s{S_RING0}, 4096")
        E.e(f"s_lshr_b32 s{S_I}, s{S_W}, 2")
        E.e(f"s_and_b32 s{S_J}, s{S_W}, 3")
        E.e(f"v_lshlrev_b32 v5, 4, v{L}")
        E.e(f"v_add_u32 v{V_RW}, s{S_RING0}, v5")
        E.e(f"v_bfe_u32 v5, v{L}, 2, 3")
        E.e(f"v_lshrrev_b32 v6, 1, v5")
        E.e(f"v_lshlrev_b32 v6, 1, v6")
        E.e(f"v_bfe_u32 v7, v{L}, 1, 1")
        E.e(f"v_xor_b32 v6, v6, v7")
        E.e(f"v_lshlrev_b32 v6, 4, v6")
        E.e(f"v_lshl_add_u32 v6, v5, 7, v6")
        E.e(f"v_and_b32 v8, 1, v{L}")
        E.e(f"v_lshl_add_u32 v6, v8, 3, v6")
        E.e(f"v_lshrrev_b32 v9, 5, v{L}")
        E.e(f"v_lshl_add_u32 v6, v9, 10, v6")
        E.e(f"v_add_u32 v{V_TR4}, s{S_RING0}, v6")
        for t in range(1, 4): E.e(f"v_xor_b32 v{V_TR4+t}, {t<<5}, v{V_TR4}")
        E.e(f"v_lshrrev_b32 v6, 2, v5")
        E.e(f"v_lshlrev_b32 v6, 1, v6")
        E.e(f"v_xor_b32 v6, v6, v7")
        E.e(f"v_lshlrev_b32 v6, 4, v6")
        E.e(f"v_lshl_add_u32 v6, v8, 3, v6")
        E.e(f"v_lshl_add_u32 v10, v9, 3, v5")
        E.e(f"v_lshl_add_u32 v6, v10, 6, v6")
        E.e(f"v_add_u32 v{V_TR2}, s{S_RING0}, v6")
        E.e(f"v_xor_b32 v{V_TR2+1}, 32, v{V_TR2}")
        E.e(f"v_and_b32 v5, 15, v{L}")
        E.e(f"v_and_b32 v6, 6, v{L}")
        E.e(f"v_xor_b32 v6, v6, v2")
        E.e(f"v_lshlrev_b32 v6, 4, v6")
        E.e(f"v_lshl_add_u32 v6, v5, 7, v6")
        E.e(f"v_add_u32 v{V_AK}, s{S_RING0}, v6")
        E.e(f"v_xor_b32 v{V_AK+1}, 64, v{V_AK}")
        E.e(f"v_xor_b32 v6, v5, v3")
        E.e(f"v_lshl_add_u32 v6, v2, 4, v6")
        E.e(f"v_lshlrev_b32 v{V_BA}, 4, v6")
        E.e(f"v_add_u32 v{V_BB}, 40960, v{V_BA}")
        E.e(f"s_mul_i32 s{S_T0}, s{S_I}, 40960")
        E.e(f"v_add_u32 v{V_BH}, s{S_T0}, v{V_BA}")
        E.e(f"s_mul_i32 s{S_WB_B}, s{S_W}, 10240")
        E.e(f"s_mul_i32 s{S_WB_A}, s{S_W}, 5120")
        E.e(f"s_mov_b32 s{S_C}, 0x3db8aa3b")
        J, B = S_JX, S_B
        E.e(f"s_and_b32 s{J}, s2, 7"); E.e(f"s_lshr_b32 s{B}, s2, 3")
        T = S_T0
        E.e(f"s_lshr_b32 s{T}, s{B}, 1")
        if not self.opt.rot: E.e(f"s_mov_b32 s{T}, 0")
        for _ in range(2):
            E.e(f"s_sub_u32 s{T+1}, s{T}, 7"); E.e(f"s_cmp_ge_u32 s{T}, 7"); E.e(f"s_cselect_b32 s{T}, s{T+1}, s{T}")
        for kp in range(7):
            E.e(f"s_add_u32 s{T+1}, s{T}, {kp}"); E.e(f"s_sub_u32 s{T+2}, s{T+1}, 7"); E.e(f"s_cmp_ge_u32 s{T+1}, 7")
            E.e(f"s_cselect_b32 s{T+1}, s{T+2}, s{T+1}"); E.e(f"s_lshl_b32 s{S_ROT+kp}, s{T+1}, 19")
        E.e(f"s_add_u32 s{T+1}, s{T}, s{S_W}"); E.e(f"s_sub_u32 s{T+2}, s{T+1}, 7"); E.e(f"s_cmp_ge_u32 s{T+1}, 7")
        E.e(f"s_cselect_b32 s{T+1}, s{T+2}, s{T+1}"); E.e(f"s_lshl_b32 s99, s{T+1}, 7")
        E.e(f"s_mul_i32 s{S_WOPF}, s{B}, {16*896}")
        E.e("s_waitcnt lgkmcnt(0)")
        if self.opt.wsoff:
            E.e(f"s_add_u32 s{P_WS}, s{P_WS}, {self.opt.wsoff << 20}"); E.e(f"s_addc_u32 s{P_WS+1}, s{P_WS+1}, 0")
        for ty, pb in (("A", 0), ("B", 5)):
            E.e(f"s_mul_i32 s{T}, s{B}, 71680"); E.e(f"s_add_u32 s{T}, s{T}, s99")
            self.srd(ty + "X", pb + 0, T, 32 * 71680, True)
            E.e(f"s_lshl_b32 s{T+1}, s{S_W}, 7")
            E.e(f"s_lshl_b32 s{T}, s{J}, 10"); E.e(f"s_add_u32 s{T}, s{T}, s{T+1}")
            self.srd(ty + "WQ", pb + 3, T, 448 * 8192)
            E.e(f"s_mul_i32 s{T}, s{J}, {512*896}"); E.e(f"s_add_u32 s{T}, s{T}, s{T+1}")
            self.srd(ty + "WO", pb + 4, T, 4096 * 896, True)
            if ty == "A":
                tot = 32 * 8 * 262144
                E.e(f"s_lshl_b32 s{T+2}, s2, 18")
                E.e(f"s_lshl_b32 s{T}, s{S_W}, 14"); E.e(f"s_add_u32 s{T}, s{T}, s{T+2}")
                self.srd("AK", 1, T, tot)
                E.e(f"s_lshl_b32 s{T}, s{S_W}, 6"); E.e(f"s_add_u32 s{T}, s{T}, s{T+2}")
                self.srd("AV", 2, T, tot)
            else:
                tot = 32 * 16 * 262144
                E.e(f"s_lshl_b32 s{T+2}, s2, 19")
                E.e(f"s_lshl_b32 s{T}, s{S_I}, 18"); E.e(f"s_add_u32 s{T+2}, s{T+2}, s{T}")
                E.e(f"s_lshl_b32 s{T}, s{S_J}, 15"); E.e(f"s_add_u32 s{T}, s{T}, s{T+2}")
                self.srd("BK", 6, T, tot)
                E.e(f"s_lshl_b32 s{T}, s{S_J}, 7"); E.e(f"s_add_u32 s{T}, s{T}, s{T+2}")
                self.srd("BV", 7, T, tot)
            br = 0 if ty == "A" else 1
            E.e(f"s_add_u32 s{T}, s2, {br*256}"); E.e(f"s_mul_i32 s{T}, s{T}, {PART}"); E.e(f"s_add_u32 s{T}, s{T}, s{S_WB_B}")
            self.srd(ty + "P", 12, T, 512 * PART, True)
        self.nst = 0
        if self.opt.stamps:
            E.e(f"v_mov_b32 v{V_ST}, 0")
            self.stamp()
            E.e(f"s_memrealtime s[{S_T2}:{S_T3}]"); E.e("s_waitcnt lgkmcnt(0)"); E.e(f"v_writelane_b32 v{V_ST}, s{S_T2}, 62")
        if self.opt.tlb:
            for nm in ("K", "V", "WO", "P"):
                for ty in "AB":
                    d = SRD[ty + nm]
                    E.e(f"s_load_dword s100, s[{d}:{d+1}], 0")
        if self.opt.prio:
            E.e(f"s_cmp_ge_u32 s{S_W}, 4"); E.e("s_cbranch_scc0 L_noprio"); E.e("s_setprio 1"); E.lab("L_noprio")
        if self.opt.order == "par":
            E.e(f"s_and_b32 s{T}, s{B}, 1"); E.e(f"s_cmp_eq_u32 s{T}, 0")
        elif self.opt.order == "A": E.e("s_cmp_eq_u32 s2, s2")
        else: E.e("s_cmp_lg_u32 s2, s2")
        E.e("s_cbranch_scc0 L_progBA")

    def program(self, t1, t2):
        E = self.E
        self.prog = t1 + t2
        E.lab(f"L_prog{self.prog}")
        E.q = []; E.vq = []
        self.flags = set(); self.regsrc = {}
        self.st = round_stream(t1) + round_stream(t2)
        self.nst = 1
        self.plan_k(t1, 14, self.opt.kreg)
        self.plan_w()
        for pos in range(2):
            for unit in range(2): self.refill(pos, unit)
        self.x_load(t1)
        early = self.kall[:self.opt.kearly]; self.kpend = self.kall[self.opt.kearly:]
        self.x_addr(V_T0)
        E.drain()
        for unit in range(2):
            self.a_reads(0, unit)
            self.refill(2, unit)
        for f in range(10): self.x_write1(V_T0, f)
        for (n, u, b) in early: self.reg_load(n, u, b)
        self.barrier()
        n = self.round(t1, 0, True, t2)
        n = self.round(t2, n, False, t1)
        assert n == len(self.st)
        self.part_store(t2)
        l1, l2 = f"L_r{self.prog}1", f"L_r{self.prog}2"
        if not self.opt.rl_at:
            self.red_loads(t1, l1)
            E.vm_need("ST")
            self.barrier()
            self.signal(t2, f"L_sig{self.prog}b")
            self.red_sum(t1, l1)
        else:
            self.red_sum(t1, l1)
            E.vm_need("ST")
            self.barrier()
            self.signal(t2, f"L_sig{self.prog}b")
        self.stamp()
        self.poll(t2, l2, bool(self.opt.allpoll))
        self.stamp()
        self.red_loads(t2, l2)
        self.red_sum(t2, l2)
        if self.opt.stamps:
            E.e("s_waitcnt vmcnt(0)")
            self.stamp()
            print("nstamps", self.nst, file=sys.stderr)
            E.e(f"s_memrealtime s[{S_T2}:{S_T3}]"); E.e("s_waitcnt lgkmcnt(0)"); E.e(f"v_writelane_b32 v{V_ST}, s{S_T2}, 63")
            E.e(f"s_lshl_b32 s{S_T0}, s2, 3"); E.e(f"s_add_u32 s{S_T0}, s{S_T0}, s{S_W}"); E.e(f"s_lshl_b32 s{S_T0}, s{S_T0}, 8")
            E.e(f"s_add_u32 s{S_T0}, s{S_T0}, {64<<20}")
            if self.opt.wsoff:
                E.e(f"s_sub_u32 s{P_WS}, s{P_WS}, {self.opt.wsoff << 20}"); E.e(f"s_subb_u32 s{P_WS+1}, s{P_WS+1}, 0")
            E.e(f"v_lshlrev_b32 v0, 2, v{V_LANE}"); E.e(f"v_add_u32 v0, s{S_T0}, v0")
            E.e(f"global_store_dword v0, v{V_ST}, s[{P_WS}:{P_WS+1}]")
        E.e("s_endpgm")

    def build(self):
        E = self.E
        k = NAME + "_kernel"
        head = HDR + f"; @launch grid=(256,1,1) block=(512,1,1) lds={LDS_TOTAL}\n" + '.amdgcn_target "amdgcn-amd-amdhsa--gfx950"\n'
        E.L += [".text", f".globl {k}", ".p2align 8", f".type {k},@function", f"{k}:"]
        self.setup()
        self.program("A", "B")
        E.lab("L_exit"); E.e("s_endpgm")
        self.program("B", "A")
        tail = ['.section .rodata,"a"', ".p2align 6", f".amdhsa_kernel {k}", "  .amdhsa_next_free_vgpr 256", "  .amdhsa_next_free_sgpr 102",
                "  .amdhsa_accum_offset 256", "  .amdhsa_group_segment_fixed_size 0", "  .amdhsa_kernarg_size 104",
                "  .amdhsa_user_sgpr_count 2", "  .amdhsa_user_sgpr_kernarg_segment_ptr 1",
                "  .amdhsa_system_sgpr_workgroup_id_x 1", "  .amdhsa_float_denorm_mode_32 3", ".end_amdhsa_kernel"]
        return head + "\n".join(E.L + tail) + "\n"

def main():
    ap = argparse.ArgumentParser()
    ap.add_argument("-o", default=f"cdna_kernels/{NAME}.s")
    ap.add_argument("--stamps", action="store_true")
    ap.add_argument("--order", default="par")
    ap.add_argument("--xnt", default="")
    ap.add_argument("--pst", default="sc1")
    for nm, d in (("wpf", 1), ("tlb", 0), ("rot", 1), ("half", 0), ("wreg", 0), ("wlag", 4), ("wbar", 0), ("wbo", 17), ("prio", 0), ("wsoff", 0), ("pre", 0), ("rl_at", 0), ("allpoll", 0), ("kb", 1), ("kbar", 0), ("kreg", 0), ("vt", 0), ("tfrag", 5), ("nex", 4), ("kreg2", 0), ("kearly", 0), ("kearly2", 0), ("wqnt", 0), ("s0", 1), ("s1", 6), ("s2", 8), ("s3", 13), ("eb", 28),
                  ("kq0", 3), ("kqs", 10), ("ko0", 3), ("kos", 26)):
        ap.add_argument("--" + nm, type=int, default=d)
    opt = ap.parse_args()
    if opt.xnt: opt.xnt = " " + opt.xnt
    open(opt.o, "w").write(Gen(opt).build())
if __name__ == "__main__": main()
```

```python
import sys, argparse

NAME = "concat_heads__gqa_block_cached__mha_block_cached__near_ridge"
HDR = open("cdna_kernels/%s.s.ref" % NAME).read().split("; Override launch geometry")[0]

ACC, ACC2, BF, AF = 0, 80, 160, 200
V_LPKV, V_LPWQ, V_LPWO = 232, 233, 234
V_LANE = 235
V_TR4, V_AK = 236, 240
V_BA, V_BB, V_BH = 242, 243, 244
V_ST = 245
V_M = 246
V_T0 = 251
LDS_RING = 81920
LDS_CELL = 147456
LDS_TOTAL = 163840
S_W = 3
S_RING0, S_RING1 = 4, 5
S_C = 6
S_WOPF = 7
S_T0, S_T1, S_T2, S_T3 = 8, 9, 10, 11
S_WB = 12
S_GOFF = 13
S_I, S_J = 14, 15
SRD = {}
_s = 16
for ty in "AB":
    for nm in ("X", "WQ", "K", "V", "WO", "P"):
        SRD[ty + nm] = _s; _s += 4
S_PTR = 64
S_ROT = 90
S_JX, S_B = 97, 98
P_OUT, P_DBG, P_WS = S_PTR + 20, S_PTR + 22, S_PTR + 24
PART = 71680
S_KC = 66
S_WB_Q = 70

def vr(b, n=4): return f"v[{b}:{b+n-1}]"
def sr(b, n=4): return f"s[{b}:{b+n-1}]"

class Em:
    def __init__(self):
        self.L = []; self.q = []; self.vq = []; self.st = 0
    def e(self, s): self.L.append(s)
    def lab(self, s): self.L.append(s + ":")
    def ds(self, text, dst=(), tag=None):
        self.e(text); self.q.append((set(dst), tag))
    def _wait_idx(self, idx):
        if idx < 0: return
        n = min(len(self.q) - 1 - idx, 15)
        self.e(f"s_waitcnt lgkmcnt({n})")
        self.q = self.q[len(self.q) - n:] if n > 0 else []
    def need(self, regs):
        regs = set(regs); idx = -1
        for i, (d, t) in enumerate(self.q):
            if d & regs: idx = i
        self._wait_idx(idx)
    def need_tag(self, tag):
        idx = -1
        for i, (d, t) in enumerate(self.q):
            if t == tag: idx = i
        self._wait_idx(idx)
    def drain(self):
        self.e("s_waitcnt lgkmcnt(0)"); self.q = []
    def vm(self, text, tag=None):
        self.e(text); self.vq.append(tag)
    def vm_need(self, tag):
        idx = -1
        for i, t in enumerate(self.vq):
            if t == tag: idx = i
        if idx < 0: return
        n = min(len(self.vq) - 1 - idx, 63)
        self.e(f"s_waitcnt vmcnt({n})")
        self.vq = self.vq[len(self.vq) - n:] if n > 0 else []
    def stmp(self):
        self.st ^= 1
        return S_T0 + self.st

def acc_reg(base, p, e, t): return base + ((p * 2 + e) * 5 + t) * 4

def seg_offsets(seg, k):
    if seg == "WQ": return [(32 * (k & 1) + r) * 8192 for r in (0, 16, 4, 20)]
    if seg == "K":
        hf, p = k >> 3, k & 1
        return [(256 * hf + 32 * p + 8 * b) * 512 for b in range(4)]
    if seg == "V": return [(32 * k + 8 * b) * 512 for b in range(4)]
    if seg == "WO": return [(32 * k + 8 * b) * 896 for b in range(4)]
    raise ValueError(seg)
SEG_LP = {"WQ": V_LPWQ, "K": V_LPKV, "V": V_LPKV, "WO": V_LPWO}
SEG_NT = {"WQ": "", "K": " nt", "V": " nt", "WO": ""}

def round_stream(ty):
    return ([(ty, "WQ", k) for k in range(14)] + [(ty, "K", k) for k in range(16)] +
            [(ty, "V", k) for k in range(16)] + [(ty, "WO", k) for k in range(16)])

FR = [(p, t) for p in range(2) for t in range(5)]

class Gen:
    def __init__(self, opt):
        self.opt = opt; self.E = Em(); self.nst = 0

    def stamp(self):
        if not self.opt.stamps: return
        E = self.E
        E.drain()
        E.e(f"s_memtime s[{S_T2}:{S_T3}]"); E.e("s_waitcnt lgkmcnt(0)")
        E.e(f"v_writelane_b32 v{V_ST}, s{S_T2}, {self.nst}")
        E.e(f"s_memrealtime s[{S_T2}:{S_T3}]"); E.e("s_waitcnt lgkmcnt(0)")
        E.e(f"v_writelane_b32 v{V_ST}, s{S_T2}, {self.nst + 30}")
        self.nst += 1
    def barrier(self):
        self.E.drain(); self.E.e("s_barrier"); self.stamp()
        self.release_shared()

    def shared(self, n): return n < len(self.st) and self.st[n][0] == "A" and self.st[n][1] in ("K", "V")
    def plan_units(self):
        self.units = []; self.uidx = {}
        for n in range(len(self.st)):
            for u in ((0,) if self.shared(n) else (0, 1)):
                self.uidx[(n, u)] = len(self.units); self.units.append((n, u))
        self.unext = 0; self.ufree = 4; self.upend = None; self.rdmode = "own"
    def soff(self, pos, off):
        E = self.E
        ty, seg, k = pos
        s = E.stmp()
        if seg == "WQ": E.e(f"s_add_u32 s{s}, s{S_ROT + (k >> 1)}, {off}")
        elif seg == "K": E.e(f"s_add_u32 s{s}, s{S_KC + ((k >> 1) & 3)}, {off}")
        else: E.e(f"s_mov_b32 s{s}, {off}")
        return s
    def pump(self):
        E = self.E
        while self.unext < min(self.ufree, len(self.units)):
            ui = self.unext; n, unit = self.units[ui]
            pos = self.st[n]; ty, seg, k = pos
            slot = ui & 3
            offs = seg_offsets(seg, k)
            lo0 = (slot & 1) * 2048
            if offs[2 * unit] - lo0 < 0:
                E.e(f"s_add_u32 m0, s{S_RING0 + (slot >> 1)}, {lo0}"); lo0 = 0
            else:
                E.e(f"s_mov_b32 m0, s{S_RING0 + (slot >> 1)}")
            for i in range(2):
                lo = lo0 + i * 1024
                go = offs[2 * unit + i] - lo
                assert go >= 0
                s = self.soff(pos, go)
                off = f" offset:{lo}" if lo else ""
                fl = " nt" if n < self.opt.wqnt else SEG_NT[seg]
                E.vm(f"buffer_load_dwordx4 v{SEG_LP[seg]}, {sr(SRD[ty+seg])}, s{s} offen{off}{fl} lds", ("D", ui))
            self.unext += 1
    def set_rdmode(self, mode):
        if mode == self.rdmode: return
        for r in [V_TR4 + i for i in range(4)] + [V_AK, V_AK + 1]:
            self.E.e(f"{'v_subrev_u32' if mode == 'pair' else 'v_add_u32'} v{r}, s{S_GOFF}, v{r}")
        self.rdmode = mode
    def a_reads(self, n, unit, base, tag):
        E = self.E
        af = AF + (n & 1) * 16
        if self.st[n][1] != "K":
            for u in range(4):
                d = af + u * 4 + 2 * unit
                E.ds(f"ds_read_b64_tr_b16 {vr(d,2)}, v{V_TR4+u} offset:{base}", (d, d + 1), tag)
        else:
            for e in range(2):
                d = af + (unit * 2 + e) * 4
                E.ds(f"ds_read_b128 {vr(d)}, v{V_AK+e} offset:{base}", range(d, d + 4), tag)
    def release_shared(self):
        if self.upend is not None:
            self.ufree = self.upend + 5; self.upend = None
            self.pump()
    def site_rd(self, n, unit):
        E = self.E
        if n >= len(self.st): return
        if self.shared(n):
            ui = self.uidx[(n, 0)]
            E.vm_need(("D", ui))
            if self.upend is not None: E.need_tag(("A", self.upend))
            E.e("s_barrier")
            self.set_rdmode("pair")
            for u in range(2): self.a_reads(n, u, (ui & 3) * 2048 + u * 32768, ("A", ui))
            self.release_shared()
            self.upend = ui
        else:
            if self.upend is not None:
                E.need_tag(("A", self.upend)); E.e("s_barrier"); self.release_shared()
            ui = self.uidx[(n, unit)]
            E.vm_need(("D", ui))
            self.set_rdmode("own")
            self.a_reads(n, unit, (ui & 3) * 2048, ("A", ui))
    def site_rf(self, n, unit):
        if n >= len(self.st) or self.shared(n): return
        ui = self.uidx[(n, unit)]
        if self.unext < len(self.units): self.E.need_tag(("A", ui))
        self.ufree = ui + 5
        self.pump()

    def gemm(self, n0, steps, baddr, hooks=None, fence=None, pre=None, ns=10):
        E = self.E; opt = self.opt
        hooks = hooks or {}
        flat = [m for s in steps for m in s]
        loads = []; last = {}; slot = {}
        for i, (acc, aidx, bkey, cin) in enumerate(flat):
            if bkey not in slot:
                slot[bkey] = len(loads) % ns; loads.append(bkey)
            last[bkey] = i
        lidx = {k: i for i, k in enumerate(loads)}
        nxt = [0]
        def can(gi):
            k = nxt[0]
            if k >= len(loads): return False
            if fence and k >= fence[0] and fence[1] not in self.flags: return False
            return k < ns or last[loads[k - ns]] <= gi
        def issue_b():
            k = loads[nxt[0]]; d = BF + slot[k] * 4
            v, off = baddr(k)
            E.ds(f"ds_read_b128 {vr(d)}, v{v} offset:{off}", range(d, d + 4), "B")
            nxt[0] += 1
        while can(-1): issue_b()
        if pre: pre()
        gi = 0
        for hs, ms in enumerate(steps):
            n = n0 + hs
            sites = {opt.s0: ("rd", 0), opt.s1: ("rf", 0), opt.s2: ("rd", 1), opt.s3: ("rf", 1)}
            if self.shared(n + 1): sites = {opt.sh0: ("rd", 0)}
            for mi, (acc, aidx, bkey, cin) in enumerate(ms):
                a = AF + (n & 1) * 16 + aidx * 4
                b = BF + slot[bkey] * 4
                assert lidx[bkey] < nxt[0], "B frag not loaded (fence too late)"
                E.need(list(range(a, a + 4)) + list(range(b, b + 4)))
                c = vr(acc) if cin is None else cin
                E.e(f"v_mfma_f32_16x16x32_bf16 {vr(acc)}, {vr(a)}, {vr(b)}, {c}")
                for h in hooks.get(gi, ()): h()
                nb = 0
                while can(gi) and nb < 3: issue_b(); nb += 1
                if mi in sites:
                    what, unit = sites[mi]
                    if what == "rd": self.site_rd(n + 1, unit)
                    else: self.site_rf(n + 1, unit)
                gi += 1
        E.e("s_nop 7")

    def ba_g(self, frag):
        return (V_BA, frag * 1024) if frag < 40 else (V_BB, (frag - 40) * 1024)

    XR = ACC2
    def x_load(self, ty, only=None):
        E = self.E; t0 = V_T0
        E.e(f"v_lshrrev_b32 v{t0}, 2, v{V_LANE}")
        E.e(f"v_mul_u32_u24 v{t0}, 896, v{t0}")
        E.e(f"v_and_b32 v{t0+1}, 3, v{V_LANE}")
        E.e(f"v_lshl_add_u32 v{t0}, v{t0+1}, 4, v{t0}")
        for t in range(5):
            if only is not None and t != only: continue
            s = E.stmp()
            E.e(f"s_mov_b32 s{s}, {t*14336}")
            for sp in range(2):
                d = self.XR + (sp * 5 + t) * 4
                off = " offset:64" if sp else ""
                E.vm(f"buffer_load_dwordx4 {vr(d)}, v{t0}, {sr(SRD[ty+'X'])}, s{s} offen{off}", "X")
    def x_addr(self, t0):
        E = self.E
        E.e(f"v_lshrrev_b32 v{t0}, 2, v{V_LANE}")
        E.e(f"v_and_b32 v{t0+1}, 3, v{V_LANE}")
        E.e(f"v_lshlrev_b32 v{t0+2}, 1, v{t0+1}")
        E.e(f"v_xor_b32 v{t0}, v{t0}, v{t0+2}")
        E.e(f"v_lshl_add_u32 v{t0}, v{t0+1}, 4, v{t0}")
        E.e(f"v_lshlrev_b32 v{t0}, 4, v{t0}")
        E.e(f"v_add_u32 v{t0}, s{S_WB}, v{t0}")
    def x_write1(self, t0, f):
        self.E.vm_need("X")
        self.E.ds(f"ds_write_b128 v{t0}, {vr(self.XR+f*4)} offset:{f*1024}")

    def q_addr(self):
        E = self.E; t0 = V_T0; m = V_M
        for up in range(2):
            E.e(f"v_lshrrev_b32 v{m}, 5, v{V_LANE}")
            E.e(f"v_add_u32 v{m}, {2*up}, v{m}")
            E.e(f"v_lshlrev_b32 v{m+1}, 1, v{m}")
            E.e(f"v_and_b32 v{m+2}, 15, v{V_LANE}")
            E.e(f"v_xor_b32 v{m+1}, v{m+2}, v{m+1}")
            E.e(f"v_lshl_add_u32 v{m+1}, v{m}, 4, v{m+1}")
            E.e(f"v_lshlrev_b32 v{m+1}, 4, v{m+1}")
            E.e(f"v_bfe_u32 v{m+2}, v{V_LANE}, 4, 1")
            E.e(f"v_lshl_add_u32 v{m+1}, v{m+2}, 3, v{m+1}")
            E.e(f"v_add_u32 v{t0+up}, s{S_WB_Q}, v{m+1}")
    def q_write_t(self, t):
        E = self.E; t0 = V_T0
        for p in range(2):
            for e in range(2):
                a = acc_reg(ACC, p, e, t)
                E.e(f"v_cvt_pk_bf16_f32 v{a}, v{a}, v{a+1}")
                E.e(f"v_cvt_pk_bf16_f32 v{a+1}, v{a+2}, v{a+3}")
                E.ds(f"ds_write_b64 v{t0+e}, {vr(a,2)} offset:{(p*5+t)*1024}")

    def stat_write(self, op, regs, region, tmp, va):
        E = self.E
        E.e(f"v_lshlrev_b32 v{va}, 4, v{V_LANE}")
        E.e(f"s_lshl_b32 s{S_T2}, s{S_I}, 11"); E.e(f"s_lshl_b32 s{S_T3}, s{S_J}, 2"); E.e(f"s_add_u32 s{S_T2}, s{S_T2}, s{S_T3}")
        E.e(f"s_add_u32 s{S_T2}, s{S_T2}, {LDS_CELL + region*4096}")
        E.e(f"v_add_u32 v{va}, s{S_T2}, v{va}")
        q = regs
        E.e(f"v_mov_b32 v{tmp}, v{q[4]}")
        E.e("s_nop 1")
        prs = [(q[0], q[2]), (q[1], q[3]), (q[4], tmp)]
        for (x, y) in prs: E.e(f"v_permlane32_swap_b32 v{x}, v{y}")
        for (x, y) in prs: E.e(f"{op} v{x}, v{x}, v{y}")
        E.e(f"v_mov_b32 v{tmp}, v{q[4]}")
        E.e("s_nop 1")
        l2 = [(q[0], q[1]), (q[4], tmp)]
        for (x, y) in l2: E.e(f"v_permlane16_swap_b32 v{x}, v{y}")
        for (x, y) in l2: E.e(f"{op} v{x}, v{x}, v{y}")
        for k, (x, y) in enumerate(l2):
            E.ds(f"ds_write_b32 v{va}, v{x} offset:{k*1024}")
    def stat_read(self, op3, op, regs, region, tmps, va):
        E = self.E
        E.e(f"v_and_b32 v{va}, 15, v{V_LANE}")
        E.e(f"v_lshlrev_b32 v{va}, 4, v{va}")
        E.e(f"s_lshl_b32 s{S_T2}, s{S_I}, 11"); E.e(f"s_add_u32 s{S_T2}, s{S_T2}, {LDS_CELL + region*4096}")
        E.e(f"v_add_u32 v{va}, s{S_T2}, v{va}")
        for g in range(5):
            E.ds(f"ds_read_b128 {vr(tmps[g])}, v{va} offset:{g*256}", range(tmps[g], tmps[g] + 4))
        for g in range(5):
            v = tmps[g]
            E.need(range(v, v + 4))
            if op3:
                E.e(f"{op} v{regs[g]}, v{v}, v{v+1}")
                E.e(f"{op3} v{regs[g]}, v{regs[g]}, v{v+2}, v{v+3}")
            else:
                E.e(f"v_pk_add_f32 {vr(v,2)}, {vr(v,2)}, {vr(v+2,2)}")
                E.e(f"{op} v{regs[g]}, v{v}, v{v+1}")
    def wr_addr(self, dst): self.E.e(f"v_add_u32 v{dst}, s{S_WB}, v{V_BA}")
    def pack(self, base, p, t):
        E = self.E
        a = acc_reg(base, p, 0, t); b = acc_reg(base, p, 1, t)
        E.e(f"v_cvt_pk_bf16_f32 v{a}, v{a}, v{a+1}")
        E.e(f"v_cvt_pk_bf16_f32 v{a+1}, v{a+2}, v{a+3}")
        E.e(f"v_cvt_pk_bf16_f32 v{a+2}, v{b}, v{b+1}")
        E.e(f"v_cvt_pk_bf16_f32 v{a+3}, v{b+2}, v{b+3}")
        return a

    def max_ins(self, base, init):
        mem = [[acc_reg(base, p, e, t) + r for p in range(2) for e in range(2) for r in range(4)] for t in range(5)]
        out = []
        for k in range(0, 16, 2):
            for t in range(5):
                if k == 0 and init: out.append(f"v_max_f32 v{V_M+t}, v{mem[t][0]}, v{mem[t][1]}")
                else: out.append(f"v_max3_f32 v{V_M+t}, v{V_M+t}, v{mem[t][k]}, v{mem[t][k+1]}")
        return out
    def exp_frag(self, base, p, t, ts, s, first):
        regs = [acc_reg(base, p, e, t) + r for e in range(2) for r in range(4)]
        o = [f"v_fma_f32 v{r}, v{r}, s{S_C}, -v{V_M+t}" for r in regs]
        o += [f"v_exp_f32 v{r}, v{r}" for r in regs]
        o.append(f"v_pk_add_f32 {vr(ts,2)}, {vr(regs[0],2)}, {vr(regs[2],2)}")
        o.append(f"v_pk_add_f32 {vr(ts+2,2)}, {vr(regs[4],2)}, {vr(regs[6],2)}")
        a, b = regs[0], regs[4]
        o += [f"v_cvt_pk_bf16_f32 v{a}, v{a}, v{a+1}", f"v_cvt_pk_bf16_f32 v{a+1}, v{a+2}, v{a+3}",
              f"v_cvt_pk_bf16_f32 v{a+2}, v{b}, v{b+1}", f"v_cvt_pk_bf16_f32 v{a+3}, v{b+2}, v{b+3}"]
        o.append(f"v_pk_add_f32 {vr(ts,2)}, {vr(ts,2)}, {vr(ts+2,2)}")
        if first: o.append(f"v_add_f32 v{s}, v{ts}, v{ts+1}")
        else:
            o.append(f"v_add_f32 v{s}, v{s}, v{ts}")
            o.append(f"v_add_f32 v{s}, v{s}, v{ts+1}")
        return o
    def softmax(self):
        E = self.E; opt = self.opt
        M = [V_M + t for t in range(5)]
        for i in self.max_ins(ACC2, False): E.e(i)
        self.stat_write("v_max_f32", M, 0, AF + 16, AF + 17)
        self.barrier()
        self.stat_read("v_max3_f32", "v_max_f32", M, 0, [BF + 4 * k for k in range(5)], AF + 17)
        for t in range(5): E.e(f"v_mul_f32 v{M[t]}, s{S_C}, v{M[t]}")
        S = [BF + 32 + t for t in range(5)]
        vw = BF + 37
        self.wr_addr(vw)
        for i, (p, t) in enumerate(FR):
            for ins in self.exp_frag(ACC, p, t, AF + 20 + 4 * (i & 1), S[t], p == 0): E.e(ins)
            E.ds(f"ds_write_b128 v{vw}, {vr(acc_reg(ACC,p,0,t))} offset:{(p*5+t)*1024}")
        nex = opt.nex
        for i, (p, t) in enumerate(FR[:nex]):
            for ins in self.exp_frag(ACC2, p, t, AF + 20 + 4 * (i & 1), S[t], False): E.e(ins)
        self.barrier()
        hid = []
        for i, (p, t) in enumerate(FR[nex:]):
            ts = 252 if (i == 0 and nex == 0) else acc_reg(ACC2, FR[0][0], 1, FR[0][1])
            if i == 0 and nex == 0:
                pass
            hid += self.exp_frag(ACC2, p, t, ts, S[t], False)
        def fin(): self.stat_write("v_add_f32", S, 1, BF + 38, BF + 39)
        return hid, fin, vw

    def o_write(self):
        E = self.E
        VS = V_M
        vw = V_T0 + 1
        self.wr_addr(vw)
        for t in range(5):
            for p in range(2):
                regs = [acc_reg(ACC, p, e, t) + r for e in range(2) for r in range(4)]
                for r in regs: E.e(f"v_mul_f32 v{r}, v{r}, v{VS+t}")
                d = self.pack(ACC, p, t)
                E.ds(f"ds_write_b128 v{vw}, {vr(d)} offset:{(p*5+t)*1024}")
    def rinv(self):
        E = self.E
        M = [V_M + t for t in range(5)]
        self.stat_read(None, "v_add_f32", M, 1, [ACC2 + 60 + 4 * k for k in range(5)], V_T0 + 2)
        for t in range(5): E.e(f"v_rcp_f32 v{M[t]}, v{M[t]}")

    def part_store(self, ty):
        E = self.E
        va = V_T0 + 3
        E.e(f"v_lshlrev_b32 v{va}, 4, v{V_LANE}")
        for (p, t) in FR:
            d = self.pack(ACC, p, t)
            s = E.stmp()
            E.e(f"s_mov_b32 s{s}, {(p*5+t)*1024}")
            E.vm(f"buffer_store_dwordx4 {vr(d)}, v{va}, {sr(SRD[ty+'P'])}, s{s} offen sc1", "ST")
        E.e("s_nop 1")

    def signal(self, ty, lab):
        E = self.E
        br = 0 if ty == "A" else 1
        E.e(f"s_cmp_lg_u32 s{S_W}, 0"); E.e(f"s_cbranch_scc1 {lab}")
        E.e(f"s_lshl_b32 s{S_T2}, s{S_B}, 2")
        E.e(f"v_mov_b32 v{V_T0+2}, s{S_T2}"); E.e(f"v_mov_b32 v{V_T0+3}, 1")
        E.e("s_mov_b64 exec, 1")
        E.e(f"global_atomic_add v{V_T0+2}, v{V_T0+3}, s[{P_DBG}:{P_DBG+1}] offset:{br*128} sc1")
        E.e("s_mov_b64 exec, -1")
        E.lab(lab)

    def early_barrier(self):
        self.E.need_tag("B"); self.E.e("s_barrier")

    def round(self, ty, n0, first, other):
        E = self.E; opt = self.opt
        last = not first
        H = [{}]
        def add(idx, f): H[0].setdefault(idx, []).append(f)
        def spread(ins, i0, i1):
            n = len(ins)
            for k, x in enumerate(ins): add(i0 + (k * (i1 - i0)) // n, (lambda x=x: E.e(x)))
        def tr4(nk, keyf, cin0="0"):
            return [[(acc_reg(ACC, u >> 1, u & 1, t), u, keyf(k, t), cin0 if k == 0 else None) for t in range(5) for u in range(4)] for k in range(nk)]
        add(280 - 60, self.q_addr)
        add(280 - opt.eb, self.early_barrier)
        if last: add(100, lambda: E.vm_need("ST"))
        for t in range(opt.qin): add(260 + 4 * t + 3 + 9, (lambda t=t: self.q_write_t(t)))
        pre = (lambda: self.part_store(other)) if last else None
        self.gemm(n0, tr4(14, lambda k, t: k * 5 + t), self.ba_g, H[0], pre=pre)
        self.stamp()
        for t in range(opt.qin, 5): self.q_write_t(t)
        self.barrier()
        if last: self.signal(other, f"L_sig{self.prog}a")
        nK = n0 + 14
        steps = []
        for k in range(16):
            hf, c, p = k >> 3, (k >> 1) & 3, k & 1
            acc = ACC if hf == 0 else ACC2
            steps.append([(acc_reg(acc, p, u, t), u * 2 + e, (hf, (2 * c + e) * 5 + t), "0" if (c == 0 and e == 0) else None)
                          for e in range(2) for t in range(5) for u in range(2)])
        ba = lambda k: (V_BH, k[1] * 1024)
        H[0] = {}
        spread(self.max_ins(ACC, True), 175, 255)
        self.gemm(nK, steps, ba, H[0])
        self.stamp()
        if last: self.flag_load(other, AF + 28, 255)
        hid, fin, vw = self.softmax()
        nV = nK + 16
        H[0] = {}
        self.flags.discard("p2")
        look = 32
        e0 = 160 - look + look // 4
        spread(hid, 2, e0 - 14)
        add(e0 - 12, fin)
        add(e0, self.early_barrier)
        span = look - look // 4 - 2
        for i, (p, t) in enumerate(FR):
            add(e0 + (i * (span // 2)) // 10, (lambda p=p, t=t: E.ds(f"ds_write_b128 v{vw}, {vr(acc_reg(ACC2,p,0,t))} offset:{(p*5+t)*1024}", (), "W")))
        def bar2():
            E.need_tag("W"); E.e("s_barrier"); self.flags.add("p2")
        add(e0 + span, bar2)
        add(220, self.rinv)
        add(320 - look + look // 4, self.early_barrier)
        if last: add(200, self.reduce_setup)
        self.gemm(nV, tr4(16, lambda k, t: (k >> 3, (k & 7) * 5 + t)), ba, H[0], fence=(40, "p2"), ns=8)
        self.stamp()
        self.o_write()
        self.barrier()
        nO = nV + 16
        H[0] = {}
        if first:
            for t in range(5): add(opt.xop + t * opt.xops, (lambda t=t: self.x_load(other, t)))
            add(320 - 60, lambda: self.x_addr(V_T0))
            add(320 - 30, self.early_barrier)
            for f in range(10): add(320 - 30 + f, (lambda f=f: self.x_write1(V_T0, f)))
        else:
            add(30, lambda: self.flag_check(other, f"L_f{self.prog}"))
        self.gemm(nO, tr4(16, lambda k, t: k * 5 + t), self.ba_g, H[0])
        if first: self.barrier()
        else: self.stamp()
        return nO + 16

    RO = 112
    def poll(self, ty, lab, allw):
        E = self.E
        br = 0 if ty == "A" else 1
        if not allw:
            E.e(f"s_cmp_lg_u32 s{S_W}, 0"); E.e(f"s_cbranch_scc1 {lab}go")
        E.e(f"s_lshl_b32 s{S_T2}, s{S_B}, 2")
        E.e(f"v_mov_b32 v116, s{S_T2}")
        E.lab(f"{lab}poll")
        E.e(f"global_load_dword v117, v116, s[{P_DBG}:{P_DBG+1}] offset:{br*128} sc1")
        E.e("s_waitcnt vmcnt(0)")
        E.e(f"v_readfirstlane_b32 s{S_T2}, v117")
        E.e("s_nop 3")
        E.e(f"s_cmp_ge_u32 s{S_T2}, 8")
        E.e(f"s_cbranch_scc1 {lab}go")
        E.e("s_sleep 1")
        E.e(f"s_branch {lab}poll")
        E.lab(f"{lab}go")
        if not allw: E.e("s_barrier")
    def flag_load(self, ty, va, vd):
        E = self.E
        br = 0 if ty == "A" else 1
        self.fd = vd
        E.e(f"s_lshl_b32 s{S_T2}, s{S_B}, 2")
        E.e(f"v_mov_b32 v{va}, s{S_T2}")
        E.vm(f"global_load_dword v{vd}, v{va}, s[{P_DBG}:{P_DBG+1}] offset:{br*128} sc1", "F")
    def flag_check(self, ty, lab):
        E = self.E
        E.vm_need("F")
        E.e(f"v_readfirstlane_b32 s{S_T2}, v{self.fd}")
        E.e("s_nop 3")
        E.e(f"s_cmp_ge_u32 s{S_T2}, 8")
        E.e(f"s_cbranch_scc1 {lab}go")
        self.poll(ty, lab, True)
    def red_loads(self, ty, lab):
        E = self.E
        br = 0 if ty == "A" else 1
        E.e(f"s_add_u32 s{S_T2}, s{S_B}, {br*32}"); E.e(f"s_mul_i32 s{S_T2}, s{S_T2}, {8*PART}")
        E.e(f"s_add_u32 s16, s{P_WS}, s{S_T2}"); E.e(f"s_addc_u32 s17, s{P_WS+1}, 0"); E.e(f"s_mov_b32 s18, {8*PART}"); E.e("s_mov_b32 s19, 0x20000")
        for ps in (1, 0):
            base = 120 if ps == 0 else 80
            if ps == 1:
                E.e(f"s_cmp_lg_u32 s{S_W}, 7"); E.e(f"s_cbranch_scc1 {lab}p1")
            E.e(f"s_mov_b32 s{S_T2}, 0")
            for j in range(8):
                t = f"buffer_load_dwordx4 {vr(base+4*j)}, v{self.RO+ps}, s[16:19], s{S_T2} offen sc1"
                if ps == 1: E.e(t)
                else: E.vm(t, ("RL", j))
                if j < 7: E.e(f"s_add_u32 s{S_T2}, s{S_T2}, {PART}")
            if ps == 1: E.lab(f"{lab}p1")
    def red_sum(self, ty, lab):
        E = self.E
        br = 0 if ty == "A" else 1
        A = BF
        for ps in (1, 0):
            base = 120 if ps == 0 else 80
            if ps == 1:
                E.vm_need(("RL", 0))
                E.e(f"s_cmp_lg_u32 s{S_W}, 7"); E.e(f"s_cbranch_scc1 {lab}p2")
            for j in range(8):
                if ps == 0: E.vm_need(("RL", j))
                for k in range(4):
                    r = base + 4 * j + k
                    o = 0 if j == 0 else 8
                    E.e(f"v_lshlrev_b32 v{A+o+2*k}, 16, v{r}"); E.e(f"v_and_b32 v{A+o+1+2*k}, 0xffff0000, v{r}")
                if j:
                    for k in range(4): E.e(f"v_pk_add_f32 {vr(A+2*k,2)}, {vr(A+2*k,2)}, {vr(A+8+2*k,2)}")
            d = A + 16 + 4 * ps
            for k in range(4): E.e(f"v_cvt_pk_bf16_f32 v{d+k}, v{A+2*k}, v{A+1+2*k}")
            for h in range(2):
                t = f"buffer_store_dwordx2 {vr(d+2*h,2)}, v{self.RO+2+ps}, s[20:23], 0 offen offset:{br*896+32*h}"
                if ps == 1: E.e(t)
                else: E.vm(t, "OS")
            if ps == 1: E.lab(f"{lab}p2")
    def reduce_setup(self):
        E = self.E; R = self.RO
        E.e(f"s_mul_i32 s{S_T2}, s{S_B}, {80*1792}")
        E.e(f"s_add_u32 s20, s{P_OUT}, s{S_T2}"); E.e(f"s_addc_u32 s21, s{P_OUT+1}, 0"); E.e(f"s_mov_b32 s22, {80*1792}"); E.e("s_mov_b32 s23, 0x20000")
        E.e(f"s_mul_i32 s{S_T2}, s{S_JX}, 560")
        E.e(f"s_lshl_b32 s{S_T3}, s{S_W}, 6"); E.e(f"s_add_u32 s{S_T3}, s{S_T3}, s{S_T2}")
        E.e(f"s_add_u32 s{S_T2}, s{S_T2}, 512")
        E.e(f"v_add_u32 v104, s{S_T3}, v{V_LANE}")
        E.e(f"v_add_u32 v105, s{S_T2}, v{V_LANE}")
        for ps in range(2):
            it = 104 + ps
            E.e(f"v_lshlrev_b32 v{R+ps}, 4, v{it}")
            E.e(f"v_lshrrev_b32 v106, 6, v{it}")
            E.e(f"v_mul_u32_u24 v107, 205, v106"); E.e("v_lshrrev_b32 v107, 10, v107")
            E.e(f"v_mul_u32_u24 v108, 5, v107"); E.e("v_sub_u32 v108, v106, v108")
            E.e(f"v_and_b32 v109, 15, v{it}")
            E.e("v_lshl_add_u32 v108, v108, 4, v109")
            E.e("v_mul_u32_u24 v108, 1792, v108")
            E.e("v_lshl_add_u32 v108, v107, 6, v108")
            E.e(f"v_bfe_u32 v109, v{it}, 4, 2")
            E.e(f"v_lshl_add_u32 v{R+2+ps}, v109, 3, v108")
        E.e(f"v_cmp_gt_u32 vcc, 48, v{V_LANE}")
        E.e("v_mov_b32 v106, 0x7ff00000")
        E.e("s_nop 1")
        E.e(f"v_cndmask_b32 v{R+1}, v106, v{R+1}, vcc")
        E.e(f"v_cndmask_b32 v{R+3}, v106, v{R+3}, vcc")

    def srd(self, name, ptr, off_s, total, zero_w7=False):
        E = self.E; d = SRD[name]
        E.e(f"s_add_u32 s{d}, s{S_PTR+2*ptr}, s{off_s}")
        E.e(f"s_addc_u32 s{d+1}, s{S_PTR+2*ptr+1}, 0")
        E.e(f"s_sub_u32 s{d+2}, {total}, s{off_s}")
        E.e(f"s_mov_b32 s{d+3}, 0x20000")
        if zero_w7:
            E.e(f"s_cmp_eq_u32 s{S_W}, 7")
            E.e(f"s_cselect_b32 s{d+2}, 0, s{d+2}")

    def setup(self):
        E = self.E
        E.e("s_cmp_ge_u32 s2, 256"); E.e("s_cbranch_scc1 L_exit")
        E.e(f"s_load_dwordx16 s[{S_PTR}:{S_PTR+15}], s[0:1], 0")
        E.e(f"s_load_dwordx8 s[{S_PTR+16}:{S_PTR+23}], s[0:1], 64")
        E.e(f"s_load_dwordx2 s[{S_PTR+24}:{S_PTR+25}], s[0:1], 96")
        E.e(f"v_lshrrev_b32 v1, 6, v0")
        E.e(f"v_and_b32 v{V_LANE}, 63, v0")
        E.e(f"v_readfirstlane_b32 s{S_W}, v1")
        L = V_LANE
        E.e(f"v_and_b32 v1, 7, v{L}")
        E.e(f"v_lshrrev_b32 v2, 4, v{L}")
        E.e(f"v_lshlrev_b32 v3, 1, v2")
        E.e(f"v_xor_b32 v1, v1, v3")
        E.e(f"v_lshlrev_b32 v1, 4, v1")
        E.e(f"v_lshrrev_b32 v4, 3, v{L}")
        E.e(f"v_lshl_add_u32 v{V_LPKV}, v4, 9, v1")
        E.e(f"v_mul_u32_u24 v5, 896, v4")
        E.e(f"v_add_u32 v{V_LPWO}, v5, v1")
        E.e(f"v_and_b32 v5, 3, v4")
        E.e(f"v_lshrrev_b32 v6, 2, v4")
        E.e(f"v_lshl_add_u32 v5, v6, 3, v5")
        E.e(f"v_lshl_add_u32 v{V_LPWQ}, v5, 13, v1")
        E.e(f"s_lshl_b32 s{S_RING0}, s{S_W}, 13")
        E.e(f"s_add_u32 s{S_RING0}, s{S_RING0}, {LDS_RING}")
        E.e(f"s_add_u32 s{S_RING1}, s{S_RING0}, 4096")
        E.e(f"s_lshr_b32 s{S_I}, s{S_W}, 2")
        E.e(f"s_and_b32 s{S_J}, s{S_W}, 3")
        E.e(f"s_lshl_b32 s{S_GOFF}, s{S_I}, 15")
        E.e(f"v_bfe_u32 v5, v{L}, 2, 3")
        E.e(f"v_lshrrev_b32 v6, 1, v5")
        E.e(f"v_lshlrev_b32 v6, 1, v6")
        E.e(f"v_bfe_u32 v7, v{L}, 1, 1")
        E.e(f"v_xor_b32 v6, v6, v7")
        E.e(f"v_lshlrev_b32 v6, 4, v6")
        E.e(f"v_lshl_add_u32 v6, v5, 7, v6")
        E.e(f"v_and_b32 v8, 1, v{L}")
        E.e(f"v_lshl_add_u32 v6, v8, 3, v6")
        E.e(f"v_lshrrev_b32 v9, 5, v{L}")
        E.e(f"v_lshl_add_u32 v6, v9, 10, v6")
        E.e(f"v_add_u32 v{V_TR4}, s{S_RING0}, v6")
        for t in range(1, 4): E.e(f"v_xor_b32 v{V_TR4+t}, {t<<5}, v{V_TR4}")
        E.e(f"v_and_b32 v5, 15, v{L}")
        E.e(f"v_and_b32 v6, 6, v{L}")
        E.e(f"v_xor_b32 v6, v6, v2")
        E.e(f"v_lshlrev_b32 v6, 4, v6")
        E.e(f"v_lshl_add_u32 v6, v5, 7, v6")
        E.e(f"v_add_u32 v{V_AK}, s{S_RING0}, v6")
        E.e(f"v_xor_b32 v{V_AK+1}, 64, v{V_AK}")
        E.e(f"v_xor_b32 v6, v5, v3")
        E.e(f"v_lshl_add_u32 v6, v2, 4, v6")
        E.e(f"v_lshlrev_b32 v{V_BA}, 4, v6")
        E.e(f"v_add_u32 v{V_BB}, 40960, v{V_BA}")
        E.e(f"s_mul_i32 s{S_T0}, s{S_I}, 40960")
        E.e(f"v_add_u32 v{V_BH}, s{S_T0}, v{V_BA}")
        E.e(f"s_mul_i32 s{S_WB}, s{S_W}, 10240")
        E.e(f"s_mov_b32 s{S_C}, 0x3db8aa3b")
        J, B = S_JX, S_B
        E.e(f"s_and_b32 s{J}, s2, 7"); E.e(f"s_lshr_b32 s{B}, s2, 3")
        T = S_T0
        E.e(f"s_lshr_b32 s{T}, s{B}, 1")
        for _ in range(2):
            E.e(f"s_sub_u32 s{T+1}, s{T}, 7"); E.e(f"s_cmp_ge_u32 s{T}, 7"); E.e(f"s_cselect_b32 s{T}, s{T+1}, s{T}")
        for kp in range(7):
            E.e(f"s_add_u32 s{T+1}, s{T}, {kp}"); E.e(f"s_sub_u32 s{T+2}, s{T+1}, 7"); E.e(f"s_cmp_ge_u32 s{T+1}, 7")
            E.e(f"s_cselect_b32 s{T+1}, s{T+2}, s{T+1}"); E.e(f"s_lshl_b32 s{S_ROT+kp}, s{T+1}, 19")
        E.e(f"s_add_u32 s{T+1}, s{T}, s{S_W}"); E.e(f"s_sub_u32 s{T+2}, s{T+1}, 7"); E.e(f"s_cmp_ge_u32 s{T+1}, 7")
        E.e(f"s_cselect_b32 s{T+1}, s{T+2}, s{T+1}"); E.e(f"s_lshl_b32 s99, s{T+1}, 7")
        E.e(f"s_mul_i32 s{S_WOPF}, s{B}, {16*896}")
        E.e("s_waitcnt lgkmcnt(0)")
        for ty, pb in (("A", 0), ("B", 5)):
            E.e(f"s_mul_i32 s{T}, s{B}, 71680"); E.e(f"s_add_u32 s{T}, s{T}, s99")
            self.srd(ty + "X", pb + 0, T, 32 * 71680, True)
            E.e(f"s_lshl_b32 s{T+1}, s{S_W}, 7")
            E.e(f"s_lshl_b32 s{T}, s{J}, 10"); E.e(f"s_add_u32 s{T}, s{T}, s{T+1}")
            self.srd(ty + "WQ", pb + 3, T, 448 * 8192)
            E.e(f"s_mul_i32 s{T}, s{J}, {512*896}"); E.e(f"s_add_u32 s{T}, s{T}, s{T+1}")
            self.srd(ty + "WO", pb + 4, T, 4096 * 896, True)
            if ty == "A":
                tot = 32 * 8 * 262144
                E.e(f"s_lshl_b32 s{T+2}, s2, 18"); E.e(f"s_lshl_b32 s{T}, s{S_I}, 13")
            else:
                tot = 32 * 16 * 262144
                E.e(f"s_lshl_b32 s{T+2}, s2, 19"); E.e(f"s_lshl_b32 s{T}, s{S_I}, 18")
            E.e(f"s_add_u32 s{T+2}, s{T+2}, s{T}")
            E.e(f"s_lshl_b32 s{T}, s{S_J}, 15"); E.e(f"s_add_u32 s{T}, s{T}, s{T+2}")
            self.srd(ty + "K", pb + 1, T, tot)
            E.e(f"s_lshl_b32 s{T}, s{S_J}, 7"); E.e(f"s_add_u32 s{T}, s{T}, s{T+2}")
            self.srd(ty + "V", pb + 2, T, tot)
            br = 0 if ty == "A" else 1
            E.e(f"s_add_u32 s{T}, s2, {br*256}"); E.e(f"s_mul_i32 s{T}, s{T}, {PART}"); E.e(f"s_add_u32 s{T}, s{T}, s{S_WB}")
            self.srd(ty + "P", 12, T, 512 * PART, True)
        E.e(f"s_lshr_b32 s{T}, s{B}, 1"); E.e(f"s_add_u32 s{T}, s{T}, s{J}"); E.e(f"s_and_b32 s{T}, s{T}, 3")
        for c in range(4):
            E.e(f"s_add_u32 s{T+1}, s{T}, {c}"); E.e(f"s_and_b32 s{T+1}, s{T+1}, 3"); E.e(f"s_lshl_b32 s{S_KC+c}, s{T+1}, 7")
        E.e(f"s_sub_u32 s{T+1}, s{S_J}, s{T}"); E.e(f"s_and_b32 s{T+1}, s{T+1}, 3"); E.e(f"s_mul_i32 s{T+1}, s{T+1}, 10240")
        E.e(f"s_mul_i32 s{S_WB_Q}, s{S_I}, 40960"); E.e(f"s_add_u32 s{S_WB_Q}, s{S_WB_Q}, s{T+1}")
        self.nst = 0
        if self.opt.stamps:
            E.e(f"v_mov_b32 v{V_ST}, 0")
            self.stamp()
            E.e(f"s_memrealtime s[{S_T2}:{S_T3}]"); E.e("s_waitcnt lgkmcnt(0)"); E.e(f"v_writelane_b32 v{V_ST}, s{S_T2}, 62")
        if self.opt.prio:
            E.e(f"s_cmp_ge_u32 s{S_W}, 4"); E.e("s_cbranch_scc0 L_noprio"); E.e("s_setprio 1"); E.lab("L_noprio")
        E.e(f"s_and_b32 s{T}, s{B}, 1"); E.e(f"s_cmp_eq_u32 s{T}, 0")
        E.e("s_cbranch_scc0 L_progBA")

    def program(self, t1, t2):
        E = self.E
        self.prog = t1 + t2
        E.lab(f"L_prog{self.prog}")
        E.q = []; E.vq = []
        self.flags = set()
        self.st = round_stream(t1) + round_stream(t2)
        self.plan_units()
        self.nst = 1
        self.pump()
        self.x_load(t1)
        self.x_addr(V_T0)
        for unit in range(2):
            self.site_rd(0, unit); self.site_rf(0, unit)
        for f in range(10): self.x_write1(V_T0, f)
        if self.opt.wpf:
            E.e(f"v_and_b32 v{V_T0+3}, 15, v{V_LANE}")
            E.e(f"v_mul_u32_u24 v{V_T0+3}, 896, v{V_T0+3}")
            for tt in "AB": E.vm(f"buffer_load_dword v255, v{V_T0+3}, {sr(SRD[tt+'WO'])}, s{S_WOPF} offen", "T")
        if self.opt.xpf:
            px = S_PTR + (0 if t2 == "A" else 10)
            v = V_M
            E.e(f"s_lshl_b32 s{S_T2}, s{S_JX}, 3"); E.e(f"s_add_u32 s{S_T2}, s{S_T2}, s{S_W}"); E.e(f"s_mul_i32 s{S_T2}, s{S_T2}, 9")
            E.e(f"v_min_u32 v{v}, 8, v{V_LANE}"); E.e(f"v_add_u32 v{v}, s{S_T2}, v{v}")
            E.e(f"v_min_u32 v{v}, 559, v{v}"); E.e(f"v_lshlrev_b32 v{v}, 7, v{v}")
            E.e(f"s_mul_i32 s{S_T2}, s{S_B}, 71680"); E.e(f"v_add_u32 v{v}, s{S_T2}, v{v}")
            E.vm(f"global_load_dword v255, v{v}, s[{px}:{px+1}]", "T")
        self.barrier()
        n = self.round(t1, 0, True, t2)
        n = self.round(t2, n, False, t1)
        assert n == len(self.st)
        self.part_store(t2)
        l1, l2 = f"L_r{self.prog}1", f"L_r{self.prog}2"
        self.red_loads(t1, l1)
        E.vm_need("ST")
        self.barrier()
        self.signal(t2, f"L_sig{self.prog}b")
        self.red_sum(t1, l1)
        self.stamp()
        self.poll(t2, l2, False)
        self.stamp()
        self.red_loads(t2, l2)
        self.red_sum(t2, l2)
        if self.opt.stamps:
            E.e("s_waitcnt vmcnt(0)")
            self.stamp()
            E.e(f"s_memrealtime s[{S_T2}:{S_T3}]"); E.e("s_waitcnt lgkmcnt(0)"); E.e(f"v_writelane_b32 v{V_ST}, s{S_T2}, 63")
            E.e(f"s_lshl_b32 s{S_T0}, s2, 3"); E.e(f"s_add_u32 s{S_T0}, s{S_T0}, s{S_W}"); E.e(f"s_lshl_b32 s{S_T0}, s{S_T0}, 8")
            E.e(f"s_add_u32 s{S_T0}, s{S_T0}, {64<<20}")
            E.e(f"v_lshlrev_b32 v0, 2, v{V_LANE}"); E.e(f"v_add_u32 v0, s{S_T0}, v0")
            E.e(f"global_store_dword v0, v{V_ST}, s[{P_WS}:{P_WS+1}]")
        E.e("s_endpgm")

    def build(self):
        E = self.E
        k = NAME + "_kernel"
        head = HDR + f"; @launch grid=(256,1,1) block=(512,1,1) lds={LDS_TOTAL}\n" + '.amdgcn_target "amdgcn-amd-amdhsa--gfx950"\n'
        E.L += [".text", f".globl {k}", ".p2align 8", f".type {k},@function", f"{k}:"]
        self.upend = None
        self.setup()
        self.program("A", "B")
        E.lab("L_exit"); E.e("s_endpgm")
        self.program("B", "A")
        tail = ['.section .rodata,"a"', ".p2align 6", f".amdhsa_kernel {k}", "  .amdhsa_next_free_vgpr 256", "  .amdhsa_next_free_sgpr 102",
                "  .amdhsa_accum_offset 256", "  .amdhsa_group_segment_fixed_size 0", "  .amdhsa_kernarg_size 104",
                "  .amdhsa_user_sgpr_count 2", "  .amdhsa_user_sgpr_kernarg_segment_ptr 1",
                "  .amdhsa_system_sgpr_workgroup_id_x 1", "  .amdhsa_float_denorm_mode_32 3", ".end_amdhsa_kernel"]
        return head + "\n".join(E.L + tail) + "\n"

def main():
    ap = argparse.ArgumentParser()
    ap.add_argument("-o", default=f"cdna_kernels/{NAME}.s")
    ap.add_argument("--stamps", action="store_true")
    for nm, d in (("wpf", 1), ("xpf", 1), ("wqnt", 3), ("prio", 0), ("s0", 1), ("s1", 6), ("s2", 8), ("s3", 13), ("sh0", 4), ("eb", 28),
                  ("nex", 1), ("xop", 15), ("xops", 40), ("qin", 2)):
        ap.add_argument("--" + nm, type=int, default=d)
    opt = ap.parse_args()
    assert opt.nex >= 1
    open(opt.o, "w").write(Gen(opt).build())
if __name__ == "__main__": main()
```

```python
import sys, argparse

NAME = "concat_heads__gqa_block_cached__mha_block_cached__near_ridge"
HDR = open("cdna_kernels/%s.s.ref" % NAME).read().split("; Override launch geometry")[0]

ACC, ACC2, BF, AF = 0, 80, 160, 200
V_LPKV, V_LPWQ, V_LPWO = 232, 233, 234
V_LANE = 235
V_TR4, V_AK = 236, 240
V_BA, V_BB, V_BH = 242, 243, 244
V_ST = 245
V_M = 246
V_T0 = 251
LDS_RING = 81920
LDS_CELL = 147456
LDS_TOTAL = 163840
S_W = 3
S_RING0, S_RING1 = 4, 5
S_C = 6
S_WOPF = 7
S_T0, S_T1, S_T2, S_T3 = 8, 9, 10, 11
S_WB = 12
S_GOFF = 13
S_I, S_J = 14, 15
SRD = {}
_s = 16
for ty in "AB":
    for nm in ("X", "WQ", "K", "V", "WO", "P"):
        SRD[ty + nm] = _s; _s += 4
S_PTR = 64
S_ROT = 90
S_JX, S_B = 97, 98
P_OUT, P_DBG, P_WS = S_PTR + 20, S_PTR + 22, S_PTR + 24
PART = 71680
S_KC = 66
S_WB_Q = 70

def vr(b, n=4): return f"v[{b}:{b+n-1}]"
def sr(b, n=4): return f"s[{b}:{b+n-1}]"

class Em:
    def __init__(self):
        self.L = []; self.q = []; self.vq = []; self.st = 0
    def e(self, s): self.L.append(s)
    def lab(self, s): self.L.append(s + ":")
    def ds(self, text, dst=(), tag=None):
        self.e(text); self.q.append((set(dst), tag))
    def _wait_idx(self, idx):
        if idx < 0: return
        n = min(len(self.q) - 1 - idx, 15)
        self.e(f"s_waitcnt lgkmcnt({n})")
        self.q = self.q[len(self.q) - n:] if n > 0 else []
    def need(self, regs):
        regs = set(regs); idx = -1
        for i, (d, t) in enumerate(self.q):
            if d & regs: idx = i
        self._wait_idx(idx)
    def need_tag(self, tag):
        idx = -1
        for i, (d, t) in enumerate(self.q):
            if t == tag: idx = i
        self._wait_idx(idx)
    def drain(self):
        self.e("s_waitcnt lgkmcnt(0)"); self.q = []
    def vm(self, text, tag=None):
        self.e(text); self.vq.append(tag)
    def vm_need(self, tag):
        idx = -1
        for i, t in enumerate(self.vq):
            if t == tag: idx = i
        if idx < 0: return
        n = min(len(self.vq) - 1 - idx, 63)
        self.e(f"s_waitcnt vmcnt({n})")
        self.vq = self.vq[len(self.vq) - n:] if n > 0 else []
    def stmp(self):
        self.st ^= 1
        return S_T0 + self.st

def acc_reg(base, p, e, t): return base + ((p * 2 + e) * 5 + t) * 4

def seg_offsets(seg, k):
    if seg == "WQ": return [(32 * (k & 1) + r) * 8192 for r in (0, 16, 4, 20)]
    if seg == "K":
        hf, p = k >> 3, k & 1
        return [(256 * hf + 32 * p + 8 * b) * 512 for b in range(4)]
    if seg == "V": return [(32 * k + 8 * b) * 512 for b in range(4)]
    if seg == "WO": return [(32 * k + 8 * b) * 896 for b in range(4)]
    raise ValueError(seg)
SEG_LP = {"WQ": V_LPWQ, "K": V_LPKV, "V": V_LPKV, "WO": V_LPWO}
SEG_NT = {"WQ": "", "K": " nt", "V": " nt", "WO": ""}

def round_stream(ty):
    return ([(ty, "WQ", k) for k in range(14)] + [(ty, "K", k) for k in range(16)] +
            [(ty, "V", k) for k in range(16)] + [(ty, "WO", k) for k in range(16)])

FR = [(p, t) for p in range(2) for t in range(5)]

class Gen:
    def __init__(self, opt):
        self.opt = opt; self.E = Em(); self.nst = 0

    def stamp(self):
        if not self.opt.stamps: return
        E = self.E
        E.drain()
        E.e(f"s_memtime s[{S_T2}:{S_T3}]"); E.e("s_waitcnt lgkmcnt(0)")
        E.e(f"v_writelane_b32 v{V_ST}, s{S_T2}, {self.nst}")
        E.e(f"s_memrealtime s[{S_T2}:{S_T3}]"); E.e("s_waitcnt lgkmcnt(0)")
        E.e(f"v_writelane_b32 v{V_ST}, s{S_T2}, {self.nst + 30}")
        self.nst += 1
    def barrier(self):
        self.E.drain(); self.E.e("s_barrier"); self.stamp()
        self.release_shared()

    def shared(self, n): return n < len(self.st) and self.st[n][0] == "A" and self.st[n][1] in ("K", "V")
    def plan_units(self):
        self.units = []; self.uidx = {}
        for n in range(len(self.st)):
            for u in ((0,) if self.shared(n) else (0, 1)):
                self.uidx[(n, u)] = len(self.units); self.units.append((n, u))
        self.unext = 0; self.ufree = 4; self.upend = None; self.rdmode = "own"; self.landed = -1
    def soff(self, pos, off):
        E = self.E
        ty, seg, k = pos
        s = E.stmp()
        if seg == "WQ": E.e(f"s_add_u32 s{s}, s{S_ROT + (k >> 1)}, {off}")
        elif seg == "K": E.e(f"s_add_u32 s{s}, s{S_KC + ((k >> 1) & 3)}, {off}")
        else: E.e(f"s_mov_b32 s{s}, {off}")
        return s
    def pump(self):
        E = self.E
        while self.unext < min(self.ufree, len(self.units)):
            ui = self.unext; n, unit = self.units[ui]
            pos = self.st[n]; ty, seg, k = pos
            slot = ui & 3
            offs = seg_offsets(seg, k)
            lo0 = (slot & 1) * 2048
            if offs[2 * unit] - lo0 < 0:
                E.e(f"s_add_u32 m0, s{S_RING0 + (slot >> 1)}, {lo0}"); lo0 = 0
            else:
                E.e(f"s_mov_b32 m0, s{S_RING0 + (slot >> 1)}")
            for i in range(2):
                lo = lo0 + i * 1024
                go = offs[2 * unit + i] - lo
                assert go >= 0
                s = self.soff(pos, go)
                off = f" offset:{lo}" if lo else ""
                fl = " nt" if n < self.opt.wqnt else SEG_NT[seg]
                E.vm(f"buffer_load_dwordx4 v{SEG_LP[seg]}, {sr(SRD[ty+seg])}, s{s} offen{off}{fl} lds", ("D", ui))
            self.unext += 1
    def set_rdmode(self, mode):
        if mode == self.rdmode: return
        for r in [V_TR4 + i for i in range(4)] + [V_AK, V_AK + 1]:
            self.E.e(f"{'v_subrev_u32' if mode == 'pair' else 'v_add_u32'} v{r}, s{S_GOFF}, v{r}")
        self.rdmode = mode
    def a_reads(self, n, unit, base, tag):
        E = self.E
        af = AF + (n & 1) * 16
        if self.st[n][1] != "K":
            for u in range(4):
                d = af + u * 4 + 2 * unit
                E.ds(f"ds_read_b64_tr_b16 {vr(d,2)}, v{V_TR4+u} offset:{base}", (d, d + 1), tag)
        else:
            for e in range(2):
                d = af + (unit * 2 + e) * 4
                E.ds(f"ds_read_b128 {vr(d)}, v{V_AK+e} offset:{base}", range(d, d + 4), tag)
    def release_shared(self, pump=True):
        if self.upend is not None:
            self.ufree = self.upend + 5; self.upend = None
            if pump: self.pump()
    def sh_bar(self, n):
        E = self.E
        if n <= self.landed: return
        m = n
        if self.opt.sh2 and self.shared(n + 1) and self.uidx[(n + 1, 0)] < self.unext: m = n + 1
        E.vm_need(("D", self.uidx[(m, 0)]))
        if self.upend is not None: E.need_tag(("A", self.upend))
        E.e("s_barrier")
        self.release_shared(False)
        self.landed = m
    def sh_rd(self, n, u):
        ui = self.uidx[(n, 0)]
        self.set_rdmode("pair")
        self.a_reads(n, u, (ui & 3) * 2048 + u * 32768, ("A", ui))
        self.upend = ui
    def site_rd(self, n, unit):
        E = self.E
        if n >= len(self.st): return
        assert not self.shared(n)
        if self.upend is not None:
            E.need_tag(("A", self.upend)); E.e("s_barrier"); self.release_shared()
        ui = self.uidx[(n, unit)]
        E.vm_need(("D", ui))
        self.set_rdmode("own")
        self.a_reads(n, unit, (ui & 3) * 2048, ("A", ui))
    def site_rf(self, n, unit):
        if n >= len(self.st) or self.shared(n): return
        ui = self.uidx[(n, unit)]
        if self.unext < len(self.units): self.E.need_tag(("A", ui))
        self.ufree = ui + 5
        self.pump()

    def gemm(self, n0, steps, baddr, hooks=None, fence=None, pre=None, ns=10):
        E = self.E; opt = self.opt
        hooks = hooks or {}
        flat = [m for s in steps for m in s]
        loads = []; last = {}; slot = {}
        for i, (acc, aidx, bkey, cin) in enumerate(flat):
            if bkey not in slot:
                slot[bkey] = len(loads) % ns; loads.append(bkey)
            last[bkey] = i
        lidx = {k: i for i, k in enumerate(loads)}
        nxt = [0]
        def can(gi):
            k = nxt[0]
            if k >= len(loads): return False
            if fence and k >= fence[0] and fence[1] not in self.flags: return False
            return k < ns or last[loads[k - ns]] <= gi
        def issue_b():
            k = loads[nxt[0]]; d = BF + slot[k] * 4
            v, off = baddr(k)
            E.ds(f"ds_read_b128 {vr(d)}, v{v} offset:{off}", range(d, d + 4), "B")
            nxt[0] += 1
        while can(-1): issue_b()
        if pre: pre()
        gi = 0
        for hs, ms in enumerate(steps):
            n = n0 + hs
            sites = {opt.s0: ("rd", 0), opt.s1: ("rf", 0), opt.s2: ("rd", 1), opt.s3: ("rf", 1)}
            if self.shared(n + 1): sites = {opt.sh0: ("sb", 0), opt.sh0 + opt.d0: ("sr", 0), opt.sh0 + opt.d1: ("sr", 1), opt.sh0 + opt.d2: ("sp", 0)}
            for mi, (acc, aidx, bkey, cin) in enumerate(ms):
                a = AF + (n & 1) * 16 + aidx * 4
                b = BF + slot[bkey] * 4
                assert lidx[bkey] < nxt[0], "B frag not loaded (fence too late)"
                E.need(list(range(a, a + 4)) + list(range(b, b + 4)))
                c = vr(acc) if cin is None else cin
                E.e(f"v_mfma_f32_16x16x32_bf16 {vr(acc)}, {vr(a)}, {vr(b)}, {c}")
                for h in hooks.get(gi, ()): h()
                nb = 0
                while can(gi) and nb < 3: issue_b(); nb += 1
                if mi in sites:
                    what, unit = sites[mi]
                    if what == "rd": self.site_rd(n + 1, unit)
                    elif what == "rf": self.site_rf(n + 1, unit)
                    elif what == "sb": self.sh_bar(n + 1)
                    elif what == "sr": self.sh_rd(n + 1, unit)
                    else: self.pump()
                gi += 1
        E.e("s_nop 7")

    def ba_g(self, frag):
        return (V_BA, frag * 1024) if frag < 40 else (V_BB, (frag - 40) * 1024)

    XR = ACC2
    def x_load(self, ty, only=None, fl=""):
        E = self.E; t0 = V_T0
        E.e(f"v_lshrrev_b32 v{t0}, 2, v{V_LANE}")
        E.e(f"v_mul_u32_u24 v{t0}, 896, v{t0}")
        E.e(f"v_and_b32 v{t0+1}, 3, v{V_LANE}")
        E.e(f"v_lshl_add_u32 v{t0}, v{t0+1}, 4, v{t0}")
        for t in range(5):
            if only is not None and t != only: continue
            s = E.stmp()
            E.e(f"s_mov_b32 s{s}, {t*14336}")
            for sp in range(2):
                d = self.XR + (sp * 5 + t) * 4
                off = " offset:64" if sp else ""
                E.vm(f"buffer_load_dwordx4 {vr(d)}, v{t0}, {sr(SRD[ty+'X'])}, s{s} offen{off}{fl}", "X")
    def x_addr(self, t0):
        E = self.E
        E.e(f"v_lshrrev_b32 v{t0}, 2, v{V_LANE}")
        E.e(f"v_and_b32 v{t0+1}, 3, v{V_LANE}")
        E.e(f"v_lshlrev_b32 v{t0+2}, 1, v{t0+1}")
        E.e(f"v_xor_b32 v{t0}, v{t0}, v{t0+2}")
        E.e(f"v_lshl_add_u32 v{t0}, v{t0+1}, 4, v{t0}")
        E.e(f"v_lshlrev_b32 v{t0}, 4, v{t0}")
        E.e(f"v_add_u32 v{t0}, s{S_WB}, v{t0}")
    def x_write1(self, t0, f):
        self.E.vm_need("X")
        self.E.ds(f"ds_write_b128 v{t0}, {vr(self.XR+f*4)} offset:{f*1024}")

    def q_addr(self):
        E = self.E; t0 = V_T0; m = V_M
        for up in range(2):
            E.e(f"v_lshrrev_b32 v{m}, 5, v{V_LANE}")
            E.e(f"v_add_u32 v{m}, {2*up}, v{m}")
            E.e(f"v_lshlrev_b32 v{m+1}, 1, v{m}")
            E.e(f"v_and_b32 v{m+2}, 15, v{V_LANE}")
            E.e(f"v_xor_b32 v{m+1}, v{m+2}, v{m+1}")
            E.e(f"v_lshl_add_u32 v{m+1}, v{m}, 4, v{m+1}")
            E.e(f"v_lshlrev_b32 v{m+1}, 4, v{m+1}")
            E.e(f"v_bfe_u32 v{m+2}, v{V_LANE}, 4, 1")
            E.e(f"v_lshl_add_u32 v{m+1}, v{m+2}, 3, v{m+1}")
            E.e(f"v_add_u32 v{t0+up}, s{S_WB_Q}, v{m+1}")
    def q_write_t(self, t):
        E = self.E; t0 = V_T0
        for p in range(2):
            for e in range(2):
                a = acc_reg(ACC, p, e, t)
                E.e(f"v_cvt_pk_bf16_f32 v{a}, v{a}, v{a+1}")
                E.e(f"v_cvt_pk_bf16_f32 v{a+1}, v{a+2}, v{a+3}")
                E.ds(f"ds_write_b64 v{t0+e}, {vr(a,2)} offset:{(p*5+t)*1024}")

    def stat_write(self, op, regs, region, tmp, va):
        E = self.E
        E.e(f"v_lshlrev_b32 v{va}, 4, v{V_LANE}")
        E.e(f"s_lshl_b32 s{S_T2}, s{S_I}, 11"); E.e(f"s_lshl_b32 s{S_T3}, s{S_J}, 2"); E.e(f"s_add_u32 s{S_T2}, s{S_T2}, s{S_T3}")
        E.e(f"s_add_u32 s{S_T2}, s{S_T2}, {LDS_CELL + region*4096}")
        E.e(f"v_add_u32 v{va}, s{S_T2}, v{va}")
        q = regs
        E.e(f"v_mov_b32 v{tmp}, v{q[4]}")
        E.e("s_nop 1")
        prs = [(q[0], q[2]), (q[1], q[3]), (q[4], tmp)]
        for (x, y) in prs: E.e(f"v_permlane32_swap_b32 v{x}, v{y}")
        for (x, y) in prs: E.e(f"{op} v{x}, v{x}, v{y}")
        E.e(f"v_mov_b32 v{tmp}, v{q[4]}")
        E.e("s_nop 1")
        l2 = [(q[0], q[1]), (q[4], tmp)]
        for (x, y) in l2: E.e(f"v_permlane16_swap_b32 v{x}, v{y}")
        for (x, y) in l2: E.e(f"{op} v{x}, v{x}, v{y}")
        for k, (x, y) in enumerate(l2):
            E.ds(f"ds_write_b32 v{va}, v{x} offset:{k*1024}")
    def stat_read(self, op3, op, regs, region, tmps, va):
        E = self.E
        E.e(f"v_and_b32 v{va}, 15, v{V_LANE}")
        E.e(f"v_lshlrev_b32 v{va}, 4, v{va}")
        E.e(f"s_lshl_b32 s{S_T2}, s{S_I}, 11"); E.e(f"s_add_u32 s{S_T2}, s{S_T2}, {LDS_CELL + region*4096}")
        E.e(f"v_add_u32 v{va}, s{S_T2}, v{va}")
        for g in range(5):
            E.ds(f"ds_read_b128 {vr(tmps[g])}, v{va} offset:{g*256}", range(tmps[g], tmps[g] + 4))
        for g in range(5):
            v = tmps[g]
            E.need(range(v, v + 4))
            if op3:
                E.e(f"{op} v{regs[g]}, v{v}, v{v+1}")
                E.e(f"{op3} v{regs[g]}, v{regs[g]}, v{v+2}, v{v+3}")
            else:
                E.e(f"v_pk_add_f32 {vr(v,2)}, {vr(v,2)}, {vr(v+2,2)}")
                E.e(f"{op} v{regs[g]}, v{v}, v{v+1}")
    def wr_addr(self, dst): self.E.e(f"v_add_u32 v{dst}, s{S_WB}, v{V_BA}")
    def pack(self, base, p, t):
        E = self.E
        a = acc_reg(base, p, 0, t); b = acc_reg(base, p, 1, t)
        E.e(f"v_cvt_pk_bf16_f32 v{a}, v{a}, v{a+1}")
        E.e(f"v_cvt_pk_bf16_f32 v{a+1}, v{a+2}, v{a+3}")
        E.e(f"v_cvt_pk_bf16_f32 v{a+2}, v{b}, v{b+1}")
        E.e(f"v_cvt_pk_bf16_f32 v{a+3}, v{b+2}, v{b+3}")
        return a

    def max_ins(self, base, init):
        mem = [[acc_reg(base, p, e, t) + r for p in range(2) for e in range(2) for r in range(4)] for t in range(5)]
        out = []
        for k in range(0, 16, 2):
            for t in range(5):
                if k == 0 and init: out.append(f"v_max_f32 v{V_M+t}, v{mem[t][0]}, v{mem[t][1]}")
                else: out.append(f"v_max3_f32 v{V_M+t}, v{V_M+t}, v{mem[t][k]}, v{mem[t][k+1]}")
        return out
    def exp_frag(self, base, p, t, ts, s, first):
        regs = [acc_reg(base, p, e, t) + r for e in range(2) for r in range(4)]
        o = [f"v_fma_f32 v{r}, v{r}, s{S_C}, -v{V_M+t}" for r in regs]
        o += [f"v_exp_f32 v{r}, v{r}" for r in regs]
        o.append(f"v_pk_add_f32 {vr(ts,2)}, {vr(regs[0],2)}, {vr(regs[2],2)}")
        o.append(f"v_pk_add_f32 {vr(ts+2,2)}, {vr(regs[4],2)}, {vr(regs[6],2)}")
        a, b = regs[0], regs[4]
        o += [f"v_cvt_pk_bf16_f32 v{a}, v{a}, v{a+1}", f"v_cvt_pk_bf16_f32 v{a+1}, v{a+2}, v{a+3}",
              f"v_cvt_pk_bf16_f32 v{a+2}, v{b}, v{b+1}", f"v_cvt_pk_bf16_f32 v{a+3}, v{b+2}, v{b+3}"]
        o.append(f"v_pk_add_f32 {vr(ts,2)}, {vr(ts,2)}, {vr(ts+2,2)}")
        if first: o.append(f"v_add_f32 v{s}, v{ts}, v{ts+1}")
        else:
            o.append(f"v_add_f32 v{s}, v{s}, v{ts}")
            o.append(f"v_add_f32 v{s}, v{s}, v{ts+1}")
        return o
    def softmax(self, ty):
        E = self.E; opt = self.opt
        M = [V_M + t for t in range(5)]
        for i in self.max_ins(ACC2, False): E.e(i)
        self.stat_write("v_max_f32", M, 0, AF + 16, AF + 17)
        self.barrier()
        self.stat_read("v_max3_f32", "v_max_f32", M, 0, [BF + 4 * k for k in range(5)], AF + 17)
        for t in range(5): E.e(f"v_mul_f32 v{M[t]}, s{S_C}, v{M[t]}")
        S = [BF + 32 + t for t in range(5)]
        vw = BF + 37
        self.wr_addr(vw)
        for i, (p, t) in enumerate(FR):
            for ins in self.exp_frag(ACC, p, t, AF + 20 + 4 * (i & 1), S[t], p == 0): E.e(ins)
            E.ds(f"ds_write_b128 v{vw}, {vr(acc_reg(ACC,p,0,t))} offset:{(p*5+t)*1024}")
        nex = opt.nex if ty == 'A' else opt.nexb
        for i, (p, t) in enumerate(FR[:nex]):
            for ins in self.exp_frag(ACC2, p, t, AF + 20 + 4 * (i & 1), S[t], False): E.e(ins)
        self.barrier()
        hid = []
        for i, (p, t) in enumerate(FR[nex:]):
            ts = 252 if (i == 0 and nex == 0) else acc_reg(ACC2, FR[0][0], 1, FR[0][1])
            if i == 0 and nex == 0:
                pass
            hid += self.exp_frag(ACC2, p, t, ts, S[t], False)
        def fin(): self.stat_write("v_add_f32", S, 1, BF + 38, BF + 39)
        return hid, fin, vw

    def o_write(self):
        E = self.E
        VS = V_M
        vw = V_T0 + 1
        self.wr_addr(vw)
        for t in range(5):
            for p in range(2):
                regs = [acc_reg(ACC, p, e, t) + r for e in range(2) for r in range(4)]
                for r in regs: E.e(f"v_mul_f32 v{r}, v{r}, v{VS+t}")
                d = self.pack(ACC, p, t)
                E.ds(f"ds_write_b128 v{vw}, {vr(d)} offset:{(p*5+t)*1024}")
    def rinv(self):
        E = self.E
        M = [V_M + t for t in range(5)]
        self.stat_read(None, "v_add_f32", M, 1, [ACC2 + 60 + 4 * k for k in range(5)], V_T0 + 2)
        for t in range(5): E.e(f"v_rcp_f32 v{M[t]}, v{M[t]}")

    def part_store(self, ty, fl="sc1"):
        E = self.E
        va = V_T0 + 3
        E.e(f"v_lshlrev_b32 v{va}, 4, v{V_LANE}")
        for (p, t) in FR:
            d = self.pack(ACC, p, t)
            s = E.stmp()
            E.e(f"s_mov_b32 s{s}, {(p*5+t)*1024}")
            E.vm(f"buffer_store_dwordx4 {vr(d)}, v{va}, {sr(SRD[ty+'P'])}, s{s} offen {fl}", "ST")
        E.e("s_nop 1")

    def part_pack(self):
        E = self.E
        for i, (p, t) in enumerate(FR):
            a = acc_reg(ACC, p, 0, t); b = acc_reg(ACC, p, 1, t); d = ACC2 + 40 + 4 * i
            E.e(f"v_cvt_pk_bf16_f32 v{d}, v{a}, v{a+1}")
            E.e(f"v_cvt_pk_bf16_f32 v{d+1}, v{a+2}, v{a+3}")
            E.e(f"v_cvt_pk_bf16_f32 v{d+2}, v{b}, v{b+1}")
            E.e(f"v_cvt_pk_bf16_f32 v{d+3}, v{b+2}, v{b+3}")
    def part_store1(self, ty, i):
        E = self.E
        va = V_T0 + 3
        if i == 0: E.e(f"v_lshlrev_b32 v{va}, 4, v{V_LANE}")
        s = E.stmp()
        E.e(f"s_mov_b32 s{s}, {i*1024}")
        E.vm(f"buffer_store_dwordx4 {vr(ACC2+40+4*i)}, v{va}, {sr(SRD[ty+'P'])}, s{s} offen sc1", "ST")

    def signal(self, ty, lab, wb=False):
        E = self.E
        br = 0 if ty == "A" else 1
        E.e(f"s_cmp_lg_u32 s{S_W}, 0"); E.e(f"s_cbranch_scc1 {lab}")
        if wb:
            E.e("buffer_wbl2 sc1"); E.e("s_waitcnt vmcnt(0)")
        E.e(f"s_lshl_b32 s{S_T2}, s{S_B}, 2")
        E.e(f"v_mov_b32 v{V_T0+2}, s{S_T2}"); E.e(f"v_mov_b32 v{V_T0+3}, 1")
        E.e("s_mov_b64 exec, 1")
        E.e(f"global_atomic_add v{V_T0+2}, v{V_T0+3}, s[{P_DBG}:{P_DBG+1}] offset:{br*128} sc1")
        E.e("s_mov_b64 exec, -1")
        E.lab(lab)

    def early_barrier(self):
        self.E.need_tag("B"); self.E.e("s_barrier")

    def round(self, ty, n0, first, other):
        E = self.E; opt = self.opt
        last = not first
        H = [{}]
        def add(idx, f): H[0].setdefault(idx, []).append(f)
        def spread(ins, i0, i1):
            n = len(ins)
            for k, x in enumerate(ins): add(i0 + (k * (i1 - i0)) // n, (lambda x=x: E.e(x)))
        def tr4(nk, keyf, cin0="0"):
            return [[(acc_reg(ACC, u >> 1, u & 1, t), u, keyf(k, t), cin0 if k == 0 else None) for t in range(5) for u in range(4)] for k in range(nk)]
        add(280 - 60, self.q_addr)
        add(280 - opt.eb, self.early_barrier)
        if last and not opt.dst: add(100, lambda: E.vm_need("ST"))
        if last and opt.dst == 2:
            for i in range(10): add(opt.dst0 + i * opt.dsts, (lambda i=i: self.part_store1(other, i)))
        for t in range(opt.qin): add(260 + 4 * t + 3 + 9, (lambda t=t: self.q_write_t(t)))
        pre = ((lambda: self.part_store(other, "" if opt.wb else "sc1")) if not opt.dst else self.part_pack) if last else None
        self.gemm(n0, tr4(14, lambda k, t: k * 5 + t), self.ba_g, H[0], pre=pre)
        self.stamp()
        for t in range(opt.qin, 5): self.q_write_t(t)
        self.barrier()
        if last and not opt.dst: self.signal(other, f"L_sig{self.prog}a", opt.wb)
        nK = n0 + 14
        steps = []
        for k in range(16):
            hf, c, p = k >> 3, (k >> 1) & 3, k & 1
            acc = ACC if hf == 0 else ACC2
            steps.append([(acc_reg(acc, p, u, t), u * 2 + e, (hf, (2 * c + e) * 5 + t), "0" if (c == 0 and e == 0) else None)
                          for e in range(2) for t in range(5) for u in range(2)])
        ba = lambda k: (V_BH, k[1] * 1024)
        H[0] = {}
        spread(self.max_ins(ACC, True), 175, 255)
        if last and opt.dst == 1:
            for i in range(10): add(opt.dst0 + i * opt.dsts, (lambda i=i: self.part_store1(other, i)))
        if last and opt.dst: add(300, lambda: E.vm_need("ST"))
        self.gemm(nK, steps, ba, H[0])
        self.stamp()
        if last and not opt.dst: self.flag_load(other, AF + 28, 255)
        hid, fin, vw = self.softmax(ty)
        if last and opt.dst: self.signal(other, f"L_sig{self.prog}a")
        nV = nK + 16
        H[0] = {}
        self.flags.discard("p2")
        look = 32
        e0 = 160 - look + look // 4
        spread(hid, 2, e0 - 14)
        add(e0 - 12, fin)
        add(e0, self.early_barrier)
        span = look - look // 4 - 2
        for i, (p, t) in enumerate(FR):
            add(e0 + (i * (span // 2)) // 10, (lambda p=p, t=t: E.ds(f"ds_write_b128 v{vw}, {vr(acc_reg(ACC2,p,0,t))} offset:{(p*5+t)*1024}", (), "W")))
        def bar2():
            E.need_tag("W"); E.e("s_barrier"); self.flags.add("p2")
        add(e0 + span, bar2)
        add(220, self.rinv)
        add(320 - look + look // 4, self.early_barrier)
        if last: add(200, self.reduce_setup)
        if last and opt.dst: add(300, lambda: self.flag_load(other, V_T0, 255))
        self.gemm(nV, tr4(16, lambda k, t: (k >> 3, (k & 7) * 5 + t)), ba, H[0], fence=(40, "p2"), ns=8)
        self.stamp()
        self.o_write()
        self.barrier()
        nO = nV + 16
        H[0] = {}
        if first:
            for t in range(5): add(opt.xop + t * opt.xops, (lambda t=t: self.x_load(other, t, " nt" if opt.x2nt else "")))
            add(320 - 60, lambda: self.x_addr(V_T0))
            add(320 - 30, self.early_barrier)
            for f in range(10): add(320 - 30 + f, (lambda f=f: self.x_write1(V_T0, f)))
        else:
            add(30, lambda: self.flag_check(other, f"L_f{self.prog}"))
        self.gemm(nO, tr4(16, lambda k, t: k * 5 + t), self.ba_g, H[0])
        if first: self.barrier()
        else: self.stamp()
        return nO + 16

    RO = 112
    def poll(self, ty, lab, allw):
        E = self.E
        br = 0 if ty == "A" else 1
        if not allw:
            E.e(f"s_cmp_lg_u32 s{S_W}, 0"); E.e(f"s_cbranch_scc1 {lab}go")
        E.e(f"s_lshl_b32 s{S_T2}, s{S_B}, 2")
        E.e(f"v_mov_b32 v116, s{S_T2}")
        E.lab(f"{lab}poll")
        E.e(f"global_load_dword v117, v116, s[{P_DBG}:{P_DBG+1}] offset:{br*128} sc1")
        E.e("s_waitcnt vmcnt(0)")
        E.e(f"v_readfirstlane_b32 s{S_T2}, v117")
        E.e("s_nop 3")
        E.e(f"s_cmp_ge_u32 s{S_T2}, 8")
        E.e(f"s_cbranch_scc1 {lab}go")
        E.e("s_sleep 1")
        E.e(f"s_branch {lab}poll")
        E.lab(f"{lab}go")
        if not allw: E.e("s_barrier")
    def flag_load(self, ty, va, vd):
        E = self.E
        br = 0 if ty == "A" else 1
        self.fd = vd
        E.e(f"s_lshl_b32 s{S_T2}, s{S_B}, 2")
        E.e(f"v_mov_b32 v{va}, s{S_T2}")
        E.vm(f"global_load_dword v{vd}, v{va}, s[{P_DBG}:{P_DBG+1}] offset:{br*128} sc1", "F")
    def flag_check(self, ty, lab):
        E = self.E
        E.vm_need("F")
        E.e(f"v_readfirstlane_b32 s{S_T2}, v{self.fd}")
        E.e("s_nop 3")
        E.e(f"s_cmp_ge_u32 s{S_T2}, 8")
        E.e(f"s_cbranch_scc1 {lab}go")
        self.poll(ty, lab, True)
    def red_loads(self, ty, lab):
        E = self.E
        br = 0 if ty == "A" else 1
        E.e(f"s_add_u32 s{S_T2}, s{S_B}, {br*32}"); E.e(f"s_mul_i32 s{S_T2}, s{S_T2}, {8*PART}")
        E.e(f"s_add_u32 s16, s{P_WS}, s{S_T2}"); E.e(f"s_addc_u32 s17, s{P_WS+1}, 0"); E.e(f"s_mov_b32 s18, {8*PART}"); E.e("s_mov_b32 s19, 0x20000")
        for ps in (1, 0):
            base = 120 if ps == 0 else 80
            if ps == 1:
                E.e(f"s_cmp_lg_u32 s{S_W}, 7"); E.e(f"s_cbranch_scc1 {lab}p1")
            E.e(f"s_mov_b32 s{S_T2}, 0")
            for j in range(8):
                t = f"buffer_load_dwordx4 {vr(base+4*j)}, v{self.RO+ps}, s[16:19], s{S_T2} offen sc1"
                if ps == 1: E.e(t)
                else: E.vm(t, ("RL", j))
                if j < 7: E.e(f"s_add_u32 s{S_T2}, s{S_T2}, {PART}")
            if ps == 1: E.lab(f"{lab}p1")
    def red_sum(self, ty, lab):
        E = self.E
        br = 0 if ty == "A" else 1
        A = BF
        for ps in (1, 0):
            base = 120 if ps == 0 else 80
            if ps == 1:
                E.vm_need(("RL", 0))
                E.e(f"s_cmp_lg_u32 s{S_W}, 7"); E.e(f"s_cbranch_scc1 {lab}p2")
            for j in range(8):
                if ps == 0: E.vm_need(("RL", j))
                for k in range(4):
                    r = base + 4 * j + k
                    o = 0 if j == 0 else 8
                    E.e(f"v_lshlrev_b32 v{A+o+2*k}, 16, v{r}"); E.e(f"v_and_b32 v{A+o+1+2*k}, 0xffff0000, v{r}")
                if j:
                    for k in range(4): E.e(f"v_pk_add_f32 {vr(A+2*k,2)}, {vr(A+2*k,2)}, {vr(A+8+2*k,2)}")
            d = A + 16 + 4 * ps
            for k in range(4): E.e(f"v_cvt_pk_bf16_f32 v{d+k}, v{A+2*k}, v{A+1+2*k}")
            for h in range(2):
                t = f"buffer_store_dwordx2 {vr(d+2*h,2)}, v{self.RO+2+ps}, s[20:23], 0 offen offset:{br*896+32*h}"
                if ps == 1: E.e(t)
                else: E.vm(t, "OS")
            if ps == 1: E.lab(f"{lab}p2")
    def reduce_setup(self):
        E = self.E; R = self.RO
        E.e(f"s_mul_i32 s{S_T2}, s{S_B}, {80*1792}")
        E.e(f"s_add_u32 s20, s{P_OUT}, s{S_T2}"); E.e(f"s_addc_u32 s21, s{P_OUT+1}, 0"); E.e(f"s_mov_b32 s22, {80*1792}"); E.e("s_mov_b32 s23, 0x20000")
        E.e(f"s_mul_i32 s{S_T2}, s{S_JX}, 560")
        E.e(f"s_lshl_b32 s{S_T3}, s{S_W}, 6"); E.e(f"s_add_u32 s{S_T3}, s{S_T3}, s{S_T2}")
        E.e(f"s_add_u32 s{S_T2}, s{S_T2}, 512")
        E.e(f"v_add_u32 v104, s{S_T3}, v{V_LANE}")
        E.e(f"v_add_u32 v105, s{S_T2}, v{V_LANE}")
        for ps in range(2):
            it = 104 + ps
            E.e(f"v_lshlrev_b32 v{R+ps}, 4, v{it}")
            E.e(f"v_lshrrev_b32 v106, 6, v{it}")
            E.e(f"v_mul_u32_u24 v107, 205, v106"); E.e("v_lshrrev_b32 v107, 10, v107")
            E.e(f"v_mul_u32_u24 v108, 5, v107"); E.e("v_sub_u32 v108, v106, v108")
            E.e(f"v_and_b32 v109, 15, v{it}")
            E.e("v_lshl_add_u32 v108, v108, 4, v109")
            E.e("v_mul_u32_u24 v108, 1792, v108")
            E.e("v_lshl_add_u32 v108, v107, 6, v108")
            E.e(f"v_bfe_u32 v109, v{it}, 4, 2")
            E.e(f"v_lshl_add_u32 v{R+2+ps}, v109, 3, v108")
        E.e(f"v_cmp_gt_u32 vcc, 48, v{V_LANE}")
        E.e("v_mov_b32 v106, 0x7ff00000")
        E.e("s_nop 1")
        E.e(f"v_cndmask_b32 v{R+1}, v106, v{R+1}, vcc")
        E.e(f"v_cndmask_b32 v{R+3}, v106, v{R+3}, vcc")

    def srd(self, name, ptr, off_s, total, zero_w7=False):
        E = self.E; d = SRD[name]
        E.e(f"s_add_u32 s{d}, s{S_PTR+2*ptr}, s{off_s}")
        E.e(f"s_addc_u32 s{d+1}, s{S_PTR+2*ptr+1}, 0")
        E.e(f"s_sub_u32 s{d+2}, {total}, s{off_s}")
        E.e(f"s_mov_b32 s{d+3}, 0x20000")
        if zero_w7:
            E.e(f"s_cmp_eq_u32 s{S_W}, 7")
            E.e(f"s_cselect_b32 s{d+2}, 0, s{d+2}")

    def setup(self):
        E = self.E
        E.e("s_cmp_ge_u32 s2, 256"); E.e("s_cbranch_scc1 L_exit")
        E.e(f"s_load_dwordx16 s[{S_PTR}:{S_PTR+15}], s[0:1], 0")
        E.e(f"s_load_dwordx8 s[{S_PTR+16}:{S_PTR+23}], s[0:1], 64")
        E.e(f"s_load_dwordx2 s[{S_PTR+24}:{S_PTR+25}], s[0:1], 96")
        E.e(f"v_lshrrev_b32 v1, 6, v0")
        E.e(f"v_and_b32 v{V_LANE}, 63, v0")
        E.e(f"v_readfirstlane_b32 s{S_W}, v1")
        L = V_LANE
        E.e(f"v_and_b32 v1, 7, v{L}")
        E.e(f"v_lshrrev_b32 v2, 4, v{L}")
        E.e(f"v_lshlrev_b32 v3, 1, v2")
        E.e(f"v_xor_b32 v1, v1, v3")
        E.e(f"v_lshlrev_b32 v1, 4, v1")
        E.e(f"v_lshrrev_b32 v4, 3, v{L}")
        E.e(f"v_lshl_add_u32 v{V_LPKV}, v4, 9, v1")
        E.e(f"v_mul_u32_u24 v5, 896, v4")
        E.e(f"v_add_u32 v{V_LPWO}, v5, v1")
        E.e(f"v_and_b32 v5, 3, v4")
        E.e(f"v_lshrrev_b32 v6, 2, v4")
        E.e(f"v_lshl_add_u32 v5, v6, 3, v5")
        E.e(f"v_lshl_add_u32 v{V_LPWQ}, v5, 13, v1")
        E.e(f"s_lshl_b32 s{S_RING0}, s{S_W}, 13")
        E.e(f"s_add_u32 s{S_RING0}, s{S_RING0}, {LDS_RING}")
        E.e(f"s_add_u32 s{S_RING1}, s{S_RING0}, 4096")
        E.e(f"s_lshr_b32 s{S_I}, s{S_W}, 2")
        E.e(f"s_and_b32 s{S_J}, s{S_W}, 3")
        E.e(f"s_lshl_b32 s{S_GOFF}, s{S_I}, 15")
        E.e(f"v_bfe_u32 v5, v{L}, 2, 3")
        E.e(f"v_lshrrev_b32 v6, 1, v5")
        E.e(f"v_lshlrev_b32 v6, 1, v6")
        E.e(f"v_bfe_u32 v7, v{L}, 1, 1")
        E.e(f"v_xor_b32 v6, v6, v7")
        E.e(f"v_lshlrev_b32 v6, 4, v6")
        E.e(f"v_lshl_add_u32 v6, v5, 7, v6")
        E.e(f"v_and_b32 v8, 1, v{L}")
        E.e(f"v_lshl_add_u32 v6, v8, 3, v6")
        E.e(f"v_lshrrev_b32 v9, 5, v{L}")
        E.e(f"v_lshl_add_u32 v6, v9, 10, v6")
        E.e(f"v_add_u32 v{V_TR4}, s{S_RING0}, v6")
        for t in range(1, 4): E.e(f"v_xor_b32 v{V_TR4+t}, {t<<5}, v{V_TR4}")
        E.e(f"v_and_b32 v5, 15, v{L}")
        E.e(f"v_and_b32 v6, 6, v{L}")
        E.e(f"v_xor_b32 v6, v6, v2")
        E.e(f"v_lshlrev_b32 v6, 4, v6")
        E.e(f"v_lshl_add_u32 v6, v5, 7, v6")
        E.e(f"v_add_u32 v{V_AK}, s{S_RING0}, v6")
        E.e(f"v_xor_b32 v{V_AK+1}, 64, v{V_AK}")
        E.e(f"v_xor_b32 v6, v5, v3")
        E.e(f"v_lshl_add_u32 v6, v2, 4, v6")
        E.e(f"v_lshlrev_b32 v{V_BA}, 4, v6")
        E.e(f"v_add_u32 v{V_BB}, 40960, v{V_BA}")
        E.e(f"s_mul_i32 s{S_T0}, s{S_I}, 40960")
        E.e(f"v_add_u32 v{V_BH}, s{S_T0}, v{V_BA}")
        E.e(f"s_mul_i32 s{S_WB}, s{S_W}, 10240")
        E.e(f"s_mov_b32 s{S_C}, 0x3db8aa3b")
        J, B = S_JX, S_B
        E.e(f"s_and_b32 s{J}, s2, 7"); E.e(f"s_lshr_b32 s{B}, s2, 3")
        T = S_T0
        if self.opt.cpf:
            E.e(f"s_cmp_lg_u32 s{S_W}, 7"); E.e("s_cbranch_scc1 L_nocpf")
            E.e("s_getpc_b64 s[100:101]")
            E.e(f"v_and_b32 v11, 31, v{L}"); E.e("v_lshlrev_b32 v11, 7, v11")
            E.e(f"s_lshl_b32 s{S_T0}, s{B}, 12"); E.e(f"v_add_u32 v11, s{S_T0}, v11")
            E.e(f"v_min_u32 v11, {self.opt.cpf * 1024}, v11")
            E.e("global_load_dword v255, v11, s[100:101]")
            E.lab("L_nocpf")
        E.e(f"s_lshr_b32 s{T}, s{B}, 1")
        for _ in range(2):
            E.e(f"s_sub_u32 s{T+1}, s{T}, 7"); E.e(f"s_cmp_ge_u32 s{T}, 7"); E.e(f"s_cselect_b32 s{T}, s{T+1}, s{T}")
        for kp in range(7):
            E.e(f"s_add_u32 s{T+1}, s{T}, {kp}"); E.e(f"s_sub_u32 s{T+2}, s{T+1}, 7"); E.e(f"s_cmp_ge_u32 s{T+1}, 7")
            E.e(f"s_cselect_b32 s{T+1}, s{T+2}, s{T+1}"); E.e(f"s_lshl_b32 s{S_ROT+kp}, s{T+1}, 19")
        E.e(f"s_add_u32 s{T+1}, s{T}, s{S_W}"); E.e(f"s_sub_u32 s{T+2}, s{T+1}, 7"); E.e(f"s_cmp_ge_u32 s{T+1}, 7")
        E.e(f"s_cselect_b32 s{T+1}, s{T+2}, s{T+1}"); E.e(f"s_lshl_b32 s99, s{T+1}, 7")
        E.e(f"s_mul_i32 s{S_WOPF}, s{B}, {16*896}")
        E.e("s_waitcnt lgkmcnt(0)")
        for ty, pb in (("A", 0), ("B", 5)):
            E.e(f"s_mul_i32 s{T}, s{B}, 71680"); E.e(f"s_add_u32 s{T}, s{T}, s99")
            self.srd(ty + "X", pb + 0, T, 32 * 71680, True)
            E.e(f"s_lshl_b32 s{T+1}, s{S_W}, 7")
            E.e(f"s_lshl_b32 s{T}, s{J}, 10"); E.e(f"s_add_u32 s{T}, s{T}, s{T+1}")
            self.srd(ty + "WQ", pb + 3, T, 448 * 8192)
            E.e(f"s_mul_i32 s{T}, s{J}, {512*896}"); E.e(f"s_add_u32 s{T}, s{T}, s{T+1}")
            self.srd(ty + "WO", pb + 4, T, 4096 * 896, True)
            if ty == "A":
                tot = 32 * 8 * 262144
                E.e(f"s_lshl_b32 s{T+2}, s2, 18"); E.e(f"s_lshl_b32 s{T}, s{S_I}, 13")
            else:
                tot = 32 * 16 * 262144
                E.e(f"s_lshl_b32 s{T+2}, s2, 19"); E.e(f"s_lshl_b32 s{T}, s{S_I}, 18")
            E.e(f"s_add_u32 s{T+2}, s{T+2}, s{T}")
            E.e(f"s_lshl_b32 s{T}, s{S_J}, 15"); E.e(f"s_add_u32 s{T}, s{T}, s{T+2}")
            self.srd(ty + "K", pb + 1, T, tot)
            E.e(f"s_lshl_b32 s{T}, s{S_J}, 7"); E.e(f"s_add_u32 s{T}, s{T}, s{T+2}")
            self.srd(ty + "V", pb + 2, T, tot)
            br = 0 if ty == "A" else 1
            E.e(f"s_add_u32 s{T}, s2, {br*256}"); E.e(f"s_mul_i32 s{T}, s{T}, {PART}"); E.e(f"s_add_u32 s{T}, s{T}, s{S_WB}")
            self.srd(ty + "P", 12, T, 512 * PART, True)
        E.e(f"s_lshr_b32 s{T}, s{B}, 1"); E.e(f"s_add_u32 s{T}, s{T}, s{J}"); E.e(f"s_and_b32 s{T}, s{T}, 3")
        for c in range(4):
            E.e(f"s_add_u32 s{T+1}, s{T}, {c}"); E.e(f"s_and_b32 s{T+1}, s{T+1}, 3"); E.e(f"s_lshl_b32 s{S_KC+c}, s{T+1}, 7")
        E.e(f"s_sub_u32 s{T+1}, s{S_J}, s{T}"); E.e(f"s_and_b32 s{T+1}, s{T+1}, 3"); E.e(f"s_mul_i32 s{T+1}, s{T+1}, 10240")
        E.e(f"s_mul_i32 s{S_WB_Q}, s{S_I}, 40960"); E.e(f"s_add_u32 s{S_WB_Q}, s{S_WB_Q}, s{T+1}")
        self.nst = 0
        if self.opt.stamps:
            E.e(f"v_mov_b32 v{V_ST}, 0")
            self.stamp()
            E.e(f"s_memrealtime s[{S_T2}:{S_T3}]"); E.e("s_waitcnt lgkmcnt(0)"); E.e(f"v_writelane_b32 v{V_ST}, s{S_T2}, 62")
        if self.opt.prio:
            E.e(f"s_cmp_ge_u32 s{S_W}, 4"); E.e("s_cbranch_scc0 L_noprio"); E.e("s_setprio 1"); E.lab("L_noprio")
        E.e(f"s_and_b32 s{T}, s{B}, 1"); E.e(f"s_cmp_eq_u32 s{T}, 0")
        E.e("s_cbranch_scc0 L_progBA")

    def program(self, t1, t2):
        E = self.E
        self.prog = t1 + t2
        E.lab(f"L_prog{self.prog}")
        E.q = []; E.vq = []
        self.flags = set()
        self.st = round_stream(t1) + round_stream(t2)
        self.plan_units()
        self.nst = 1
        self.pump()
        self.x_load(t1, None, " nt" if self.opt.x1nt else "")
        self.x_addr(V_T0)
        for unit in range(2):
            self.site_rd(0, unit); self.site_rf(0, unit)
        for f in range(10): self.x_write1(V_T0, f)
        if self.opt.wpf:
            E.e(f"v_and_b32 v{V_T0+3}, 15, v{V_LANE}")
            E.e(f"v_mul_u32_u24 v{V_T0+3}, 896, v{V_T0+3}")
            for tt in "AB": E.vm(f"buffer_load_dword v255, v{V_T0+3}, {sr(SRD[tt+'WO'])}, s{S_WOPF} offen", "T")
        if self.opt.xpf:
            px = S_PTR + (0 if t2 == "A" else 10)
            v = V_M
            E.e(f"s_lshl_b32 s{S_T2}, s{S_JX}, 3"); E.e(f"s_add_u32 s{S_T2}, s{S_T2}, s{S_W}"); E.e(f"s_mul_i32 s{S_T2}, s{S_T2}, 9")
            E.e(f"v_min_u32 v{v}, 8, v{V_LANE}"); E.e(f"v_add_u32 v{v}, s{S_T2}, v{v}")
            E.e(f"v_min_u32 v{v}, 559, v{v}"); E.e(f"v_lshlrev_b32 v{v}, 7, v{v}")
            E.e(f"s_mul_i32 s{S_T2}, s{S_B}, 71680"); E.e(f"v_add_u32 v{v}, s{S_T2}, v{v}")
            E.vm(f"global_load_dword v255, v{v}, s[{px}:{px+1}]", "T")
        self.barrier()
        n = self.round(t1, 0, True, t2)
        n = self.round(t2, n, False, t1)
        assert n == len(self.st)
        self.part_store(t2)
        l1, l2 = f"L_r{self.prog}1", f"L_r{self.prog}2"
        self.red_loads(t1, l1)
        E.vm_need("ST")
        self.barrier()
        self.signal(t2, f"L_sig{self.prog}b")
        self.red_sum(t1, l1)
        self.stamp()
        self.poll(t2, l2, False)
        self.stamp()
        self.red_loads(t2, l2)
        self.red_sum(t2, l2)
        if self.opt.stamps:
            E.e("s_waitcnt vmcnt(0)")
            self.stamp()
            E.e(f"s_memrealtime s[{S_T2}:{S_T3}]"); E.e("s_waitcnt lgkmcnt(0)"); E.e(f"v_writelane_b32 v{V_ST}, s{S_T2}, 63")
            E.e(f"s_lshl_b32 s{S_T0}, s2, 3"); E.e(f"s_add_u32 s{S_T0}, s{S_T0}, s{S_W}"); E.e(f"s_lshl_b32 s{S_T0}, s{S_T0}, 8")
            E.e(f"s_add_u32 s{S_T0}, s{S_T0}, {64<<20}")
            E.e(f"v_lshlrev_b32 v0, 2, v{V_LANE}"); E.e(f"v_add_u32 v0, s{S_T0}, v0")
            E.e(f"global_store_dword v0, v{V_ST}, s[{P_WS}:{P_WS+1}]")
        E.e("s_endpgm")

    def build(self):
        E = self.E
        k = NAME + "_kernel"
        head = HDR + f"; @launch grid=(256,1,1) block=(512,1,1) lds={LDS_TOTAL}\n" + '.amdgcn_target "amdgcn-amd-amdhsa--gfx950"\n'
        E.L += [".text", f".globl {k}", ".p2align 8", f".type {k},@function", f"{k}:"]
        self.upend = None
        self.setup()
        self.program("A", "B")
        E.lab("L_exit"); E.e("s_endpgm")
        self.program("B", "A")
        tail = ['.section .rodata,"a"', ".p2align 6", f".amdhsa_kernel {k}", "  .amdhsa_next_free_vgpr 256", "  .amdhsa_next_free_sgpr 102",
                "  .amdhsa_accum_offset 256", "  .amdhsa_group_segment_fixed_size 0", "  .amdhsa_kernarg_size 104",
                "  .amdhsa_user_sgpr_count 2", "  .amdhsa_user_sgpr_kernarg_segment_ptr 1",
                "  .amdhsa_system_sgpr_workgroup_id_x 1", "  .amdhsa_float_denorm_mode_32 3", ".end_amdhsa_kernel"]
        return head + "\n".join(E.L + tail) + "\n"

def main():
    ap = argparse.ArgumentParser()
    ap.add_argument("-o", default=f"cdna_kernels/{NAME}.s")
    ap.add_argument("--stamps", action="store_true")
    for nm, d in (("wpf", 1), ("xpf", 0), ("wqnt", 0), ("prio", 0), ("s0", 1), ("s1", 6), ("s2", 8), ("s3", 13), ("sh0", 4), ("eb", 28),
                  ("nex", 5), ("cpf", 0), ("nexb", 5), ("x1nt", 0), ("x2nt", 0), ("wb", 0), ("sh2", 0), ("d0", 1), ("d1", 3), ("d2", 5), ("dst", 0), ("dst0", 2), ("dsts", 1), ("xop", 15), ("xops", 40), ("qin", 2)):
        ap.add_argument("--" + nm, type=int, default=d)
    opt = ap.parse_args()
    assert opt.nex >= 1
    open(opt.o, "w").write(Gen(opt).build())
if __name__ == "__main__": main()
```

```python
import sys, argparse

NAME = "concat_heads__gqa_block_cached__mha_block_cached__near_ridge"
HDR = open("cdna_kernels/%s.s.ref" % NAME).read().split("; Override launch geometry")[0]

ACC, ACC2, BF, AF = 0, 80, 160, 200
V_LPKV, V_LPWQ, V_LPWO = 232, 233, 234
V_LANE = 235
V_TR4, V_AK = 236, 240
V_BA, V_BB, V_BH = 242, 243, 244
V_ST = 245
V_M = 246
V_T0 = 251
LDS_RING = 81920
LDS_CELL = 147456
LDS_TOTAL = 163840
S_W = 3
S_RING0, S_RING1 = 4, 5
S_C = 6
S_WOPF = 7
S_T0, S_T1, S_T2, S_T3 = 8, 9, 10, 11
S_WB = 12
S_GOFF = 13
S_I, S_J = 14, 15
SRD = {}
_s = 16
for ty in "AB":
    for nm in ("X", "WQ", "K", "V", "WO", "P"):
        SRD[ty + nm] = _s; _s += 4
S_PTR = 64
S_ROT = 90
S_JX, S_B = 97, 98
P_OUT, P_DBG, P_WS = S_PTR + 20, S_PTR + 22, S_PTR + 24
PART = 71680
WSC = 40 << 20
S_KC = 66
S_WB_Q = 70

def vr(b, n=4): return f"v[{b}:{b+n-1}]"
def sr(b, n=4): return f"s[{b}:{b+n-1}]"

class Em:
    def __init__(self):
        self.L = []; self.q = []; self.vq = []; self.st = 0
    def e(self, s): self.L.append(s)
    def lab(self, s): self.L.append(s + ":")
    def ds(self, text, dst=(), tag=None):
        self.e(text); self.q.append((set(dst), tag))
    def _wait_idx(self, idx):
        if idx < 0: return
        n = min(len(self.q) - 1 - idx, 15)
        self.e(f"s_waitcnt lgkmcnt({n})")
        self.q = self.q[len(self.q) - n:] if n > 0 else []
    def need(self, regs):
        regs = set(regs); idx = -1
        for i, (d, t) in enumerate(self.q):
            if d & regs: idx = i
        self._wait_idx(idx)
    def need_tag(self, tag):
        idx = -1
        for i, (d, t) in enumerate(self.q):
            if t == tag: idx = i
        self._wait_idx(idx)
    def drain(self):
        self.e("s_waitcnt lgkmcnt(0)"); self.q = []
    def vm(self, text, tag=None):
        self.e(text); self.vq.append(tag)
    def vm_need(self, tag):
        idx = -1
        for i, t in enumerate(self.vq):
            if t == tag: idx = i
        if idx < 0: return
        rest = self.vq[idx + 1:]
        n = sum(1 for t in rest if not (isinstance(t, str) and t.startswith("@")))
        assert n <= 63
        self.e(f"s_waitcnt vmcnt({n})")
        self.vq = rest
    def stmp(self):
        self.st ^= 1
        return S_T0 + self.st

def acc_reg(base, p, e, t): return base + ((p * 2 + e) * 5 + t) * 4

def seg_offsets(seg, k):
    if seg == "WQ": return [(32 * (k & 1) + r) * 8192 for r in (0, 16, 4, 20)]
    if seg == "K":
        hf, p = k >> 3, k & 1
        return [(256 * hf + 32 * p + 8 * b) * 512 for b in range(4)]
    if seg == "V": return [(32 * k + 8 * b) * 512 for b in range(4)]
    if seg == "WO": return [(32 * k + 8 * b) * 896 for b in range(4)]
    raise ValueError(seg)
SEG_LP = {"WQ": V_LPWQ, "K": V_LPKV, "V": V_LPKV, "WO": V_LPWO}
SEG_NT = {"WQ": "", "K": " nt", "V": " nt", "WO": ""}

def round_stream(ty):
    return ([(ty, "WQ", k) for k in range(14)] + [(ty, "K", k) for k in range(16)] +
            [(ty, "V", k) for k in range(16)] + [(ty, "WO", k) for k in range(16)])

FR = [(p, t) for p in range(2) for t in range(5)]

class Gen:
    def __init__(self, opt):
        self.opt = opt; self.E = Em(); self.nst = 0

    def stamp(self):
        if not self.opt.stamps: return
        E = self.E
        E.drain()
        E.e(f"s_memtime s[{S_T2}:{S_T3}]"); E.e("s_waitcnt lgkmcnt(0)")
        E.e(f"v_writelane_b32 v{V_ST}, s{S_T2}, {self.nst}")
        E.e(f"s_memrealtime s[{S_T2}:{S_T3}]"); E.e("s_waitcnt lgkmcnt(0)")
        E.e(f"v_writelane_b32 v{V_ST}, s{S_T2}, {self.nst + 30}")
        self.nst += 1
    def barrier(self):
        self.E.drain(); self.E.e("s_barrier"); self.stamp()
        self.release_shared()

    def shared(self, n): return n < len(self.st) and self.st[n][0] == "A" and self.st[n][1] in ("K", "V")
    def plan_units(self):
        self.units = []; self.uidx = {}
        for n in range(len(self.st)):
            for u in ((0,) if self.shared(n) else (0, 1)):
                self.uidx[(n, u)] = len(self.units); self.units.append((n, u))
        self.unext = 0; self.ufree = 4; self.upend = None; self.rdmode = "own"; self.landed = -1
    def soff(self, pos, off):
        E = self.E
        ty, seg, k = pos
        s = E.stmp()
        if seg == "WQ": E.e(f"s_add_u32 s{s}, s{S_ROT + (k >> 1)}, {off}")
        elif seg == "K": E.e(f"s_add_u32 s{s}, s{S_KC + ((k >> 1) & 3)}, {off}")
        else: E.e(f"s_mov_b32 s{s}, {off}")
        return s
    def pump(self):
        E = self.E
        while self.unext < min(self.ufree, len(self.units)):
            ui = self.unext; n, unit = self.units[ui]
            pos = self.st[n]; ty, seg, k = pos
            slot = ui & 3
            offs = seg_offsets(seg, k)
            lo0 = (slot & 1) * 2048
            if offs[2 * unit] - lo0 < 0:
                E.e(f"s_add_u32 m0, s{S_RING0 + (slot >> 1)}, {lo0}"); lo0 = 0
            else:
                E.e(f"s_mov_b32 m0, s{S_RING0 + (slot >> 1)}")
            for i in range(2):
                lo = lo0 + i * 1024
                go = offs[2 * unit + i] - lo
                assert go >= 0
                s = self.soff(pos, go)
                off = f" offset:{lo}" if lo else ""
                fl = " nt" if n < self.opt.wqnt else SEG_NT[seg]
                E.vm(f"buffer_load_dwordx4 v{SEG_LP[seg]}, {sr(SRD[ty+seg])}, s{s} offen{off}{fl} lds", ("D", ui))
            self.unext += 1
    def set_rdmode(self, mode):
        if mode == self.rdmode: return
        for r in [V_TR4 + i for i in range(4)] + [V_AK, V_AK + 1]:
            self.E.e(f"{'v_subrev_u32' if mode == 'pair' else 'v_add_u32'} v{r}, s{S_GOFF}, v{r}")
        self.rdmode = mode
    def a_reads(self, n, unit, base, tag):
        E = self.E
        af = AF + (n & 1) * 16
        if self.st[n][1] != "K":
            for u in range(4):
                d = af + u * 4 + 2 * unit
                E.ds(f"ds_read_b64_tr_b16 {vr(d,2)}, v{V_TR4+u} offset:{base}", (d, d + 1), tag)
        else:
            for e in range(2):
                d = af + (unit * 2 + e) * 4
                E.ds(f"ds_read_b128 {vr(d)}, v{V_AK+e} offset:{base}", range(d, d + 4), tag)
    def release_shared(self, pump=True):
        if self.upend is not None:
            self.ufree = self.upend + 5; self.upend = None
            if pump: self.pump()
    def sh_bar(self, n):
        E = self.E
        if n <= self.landed: return
        m = n
        if self.opt.sh2 and self.shared(n + 1) and self.uidx[(n + 1, 0)] < self.unext: m = n + 1
        E.vm_need(("D", self.uidx[(m, 0)]))
        if self.upend is not None: E.need_tag(("A", self.upend))
        E.e("s_barrier")
        self.release_shared(False)
        self.landed = m
    def sh_rd(self, n, u):
        ui = self.uidx[(n, 0)]
        self.set_rdmode("pair")
        self.a_reads(n, u, (ui & 3) * 2048 + u * 32768, ("A", ui))
        self.upend = ui
    def site_rd(self, n, unit):
        E = self.E
        if n >= len(self.st): return
        assert not self.shared(n)
        if self.upend is not None:
            E.need_tag(("A", self.upend)); E.e("s_barrier"); self.release_shared()
        ui = self.uidx[(n, unit)]
        E.vm_need(("D", ui))
        self.set_rdmode("own")
        self.a_reads(n, unit, (ui & 3) * 2048, ("A", ui))
    def site_rf(self, n, unit):
        if n >= len(self.st) or self.shared(n): return
        ui = self.uidx[(n, unit)]
        if self.unext < len(self.units): self.E.need_tag(("A", ui))
        self.ufree = ui + 5
        self.pump()

    def std_sites(self, n, base=0):
        opt = self.opt
        if self.shared(n):
            return [(base + opt.sh0, "sb", n, 0), (base + opt.sh0 + opt.d0, "sr", n, 0), (base + opt.sh0 + opt.d1, "sr", n, 1), (base + opt.sh0 + opt.d2, "sp", n, 0)]
        return [(base + opt.s0, "rd", n, 0), (base + opt.s1, "rf", n, 0), (base + opt.s2, "rd", n, 1), (base + opt.s3, "rf", n, 1)]
    def fast_sites(self, n, base):
        if self.shared(n):
            return [(base, "sb", n, 0), (base, "sr", n, 0), (base + 1, "sr", n, 1), (base + 2, "sp", n, 0)]
        return [(base, "rd", n, 0), (base + 1, "rd", n, 1), (base + 6, "rf", n, 0), (base + 8, "rf", n, 1)]
    def do_site(self, what, n, unit):
        if what == "rd": self.site_rd(n, unit)
        elif what == "rf": self.site_rf(n, unit)
        elif what == "sb": self.sh_bar(n)
        elif what == "sr": self.sh_rd(n, unit)
        else: self.pump()
    def gemm(self, n0, steps, baddr, hooks=None, fence=None, pre=None, ns=10, merge=False, ns_late=None):
        E = self.E; opt = self.opt
        hooks = hooks if hooks is not None else {}
        flat = []; sites = {}
        nst = len(steps)
        for hs, ms in enumerate(steps):
            if merge and hs >= nst - 2: break
            for (i, w, n, u) in self.std_sites(n0 + hs + 1, len(flat)): sites.setdefault(i, []).append((w, n, u))
            flat += [m + (n0 + hs,) for m in ms]
        post = []
        if merge:
            base = len(flat)
            A_, B_ = steps[-2], steps[-1]
            na, nb_ = n0 + nst - 2, n0 + nst - 1
            def tile(st, n, t): return [m + (n,) for m in st[4 * t: 4 * t + 4]]
            order = [(A_, na, 0), (A_, na, 1), (A_, na, 2), (B_, nb_, 0), (B_, nb_, 1), (B_, nb_, 2), (A_, na, 3), (B_, nb_, 3), (A_, na, 4), (B_, nb_, 4)]
            self.tile_done = {}
            for (st, n, t) in order:
                flat += tile(st, n, t)
                if n == nb_: self.tile_done[t] = len(flat) - 1
            for (i, w, n, u) in self.fast_sites(nb_, base): sites.setdefault(i, []).append((w, n, u))
            for (i, w, n, u) in self.fast_sites(nb_ + 1, base + 35):
                if i < len(flat): sites.setdefault(i, []).append((w, n, u))
                else: post.append((w, n, u))
            if callable(merge): merge()
        loads = []; last = {}
        for i, m in enumerate(flat):
            if m[2] not in last: loads.append(m[2])
            last[m[2]] = i
        slot = {}; free = list(range(ns)); busy = []
        nxt = [0]; extra = [ns_late]
        def can(gi):
            k = nxt[0]
            if k >= len(loads): return False
            if fence and k >= fence[0] and fence[1] not in self.flags: return False
            if extra[0] and gi >= extra[0][0]:
                free.extend(range(ns, extra[0][1])); extra[0] = None
            for x in list(busy):
                if x[0] <= gi: busy.remove(x); free.append(x[1])
            return bool(free)
        def issue_b():
            k = loads[nxt[0]]; sl = free.pop(0); slot[k] = sl; busy.append((last[k], sl))
            d = BF + sl * 4
            v, off = baddr(k)
            E.ds(f"ds_read_b128 {vr(d)}, v{v} offset:{off}", range(d, d + 4), "B")
            nxt[0] += 1
        self.b_left = lambda: len(loads) - nxt[0]
        self.b_issued = lambda: nxt[0]
        while can(-1): issue_b()
        if pre: pre()
        for gi, (acc, aidx, bkey, cin, n) in enumerate(flat):
            a = AF + (n & 1) * 16 + aidx * 4
            assert bkey in slot, "B frag not loaded (fence too late)"
            b = BF + slot[bkey] * 4
            E.need(list(range(a, a + 4)) + list(range(b, b + 4)))
            c = vr(acc) if cin is None else cin
            E.e(f"v_mfma_f32_16x16x32_bf16 {vr(acc)}, {vr(a)}, {vr(b)}, {c}")
            for h in hooks.get(gi, ()): h()
            nb = 0
            while nb < 3 and can(gi): issue_b(); nb += 1
            for st in sites.get(gi, ()): self.do_site(*st)
        self.post = post
        E.e("s_nop 7")

    def ba_g(self, frag):
        return (V_BA, frag * 1024) if frag < 40 else (V_BB, (frag - 40) * 1024)

    XR = ACC2
    untracked = False
    def x_load(self, ty, only=None, fl="", t0=V_T0):
        E = self.E
        E.e(f"v_lshrrev_b32 v{t0}, 3, v{V_LANE}")
        E.e(f"v_bfe_u32 v{t0+1}, v{V_LANE}, 2, 1")
        E.e(f"v_xor_b32 v{t0}, v{t0}, v{t0+1}")
        E.e(f"v_mul_u32_u24 v{t0}, 896, v{t0}")
        E.e(f"v_and_b32 v{t0+1}, 7, v{V_LANE}")
        E.e(f"v_lshl_add_u32 v{t0}, v{t0+1}, 4, v{t0}")
        for t in range(5):
            if only is not None and t != only: continue
            for h in range(2):
                s = E.stmp()
                E.e(f"s_mov_b32 s{s}, {(16*t+8*h)*896}")
                d = self.XR + (t * 2 + h) * 4
                ins = f"buffer_load_dwordx4 {vr(d)}, v{t0}, {sr(SRD[ty+'X'])}, s{s} offen{fl}"
                if self.untracked: E.e(ins)
                else: E.vm(ins, "X")
    def x_addr(self, t0):
        E = self.E
        E.e(f"v_lshrrev_b32 v{t0}, 3, v{V_LANE}")
        E.e(f"v_bfe_u32 v{t0+1}, v{V_LANE}, 2, 1")
        E.e(f"v_xor_b32 v{t0}, v{t0}, v{t0+1}")
        E.e(f"v_and_b32 v{t0+2}, 3, v{V_LANE}")
        E.e(f"v_lshl_add_u32 v{t0}, v{t0+2}, 4, v{t0}")
        E.e(f"v_lshlrev_b32 v{t0+2}, 1, v{t0+2}")
        E.e(f"v_xor_b32 v{t0}, v{t0}, v{t0+2}")
        E.e(f"v_lshlrev_b32 v{t0}, 4, v{t0}")
        E.e(f"v_mul_u32_u24 v{t0+1}, 5120, v{t0+1}")
        E.e(f"v_add3_u32 v{t0}, v{t0}, v{t0+1}, s{S_WB}")
    def xw_ins(self, t0, f): return f"ds_write_b128 v{t0}, {vr(self.XR+f*4)} offset:{(f>>1)*1024 + (f&1)*128}"
    def x_write1(self, t0, f):
        self.E.vm_need("X")
        self.E.ds(self.xw_ins(t0, f))

    def q_addr(self):
        E = self.E; t0 = V_T0; m = V_M
        for up in range(2):
            E.e(f"v_lshrrev_b32 v{m}, 5, v{V_LANE}")
            E.e(f"v_add_u32 v{m}, {2*up}, v{m}")
            E.e(f"v_lshlrev_b32 v{m+1}, 1, v{m}")
            E.e(f"v_and_b32 v{m+2}, 15, v{V_LANE}")
            E.e(f"v_xor_b32 v{m+1}, v{m+2}, v{m+1}")
            E.e(f"v_lshl_add_u32 v{m+1}, v{m}, 4, v{m+1}")
            E.e(f"v_lshlrev_b32 v{m+1}, 4, v{m+1}")
            E.e(f"v_bfe_u32 v{m+2}, v{V_LANE}, 4, 1")
            E.e(f"v_lshl_add_u32 v{m+1}, v{m+2}, 3, v{m+1}")
            E.e(f"v_add_u32 v{t0+up}, s{S_WB_Q}, v{m+1}")
    def q_write_t(self, t):
        E = self.E; t0 = V_T0
        for p in range(2):
            for e in range(2):
                a = acc_reg(ACC, p, e, t)
                E.e(f"v_cvt_pk_bf16_f32 v{a}, v{a}, v{a+1}")
                E.e(f"v_cvt_pk_bf16_f32 v{a+1}, v{a+2}, v{a+3}")
                E.ds(f"ds_write_b64 v{t0+e}, {vr(a,2)} offset:{(p*5+t)*1024}")

    def stat_write(self, op, regs, region, tmp, va):
        E = self.E
        E.e(f"v_lshlrev_b32 v{va}, 4, v{V_LANE}")
        E.e(f"s_lshl_b32 s{S_T2}, s{S_I}, 11"); E.e(f"s_lshl_b32 s{S_T3}, s{S_J}, 2"); E.e(f"s_add_u32 s{S_T2}, s{S_T2}, s{S_T3}")
        E.e(f"s_add_u32 s{S_T2}, s{S_T2}, {LDS_CELL + region*4096}")
        E.e(f"v_add_u32 v{va}, s{S_T2}, v{va}")
        q = regs
        E.e(f"v_mov_b32 v{tmp}, v{q[4]}")
        E.e("s_nop 1")
        prs = [(q[0], q[2]), (q[1], q[3]), (q[4], tmp)]
        for (x, y) in prs: E.e(f"v_permlane32_swap_b32 v{x}, v{y}")
        for (x, y) in prs: E.e(f"{op} v{x}, v{x}, v{y}")
        E.e(f"v_mov_b32 v{tmp}, v{q[4]}")
        E.e("s_nop 1")
        l2 = [(q[0], q[1]), (q[4], tmp)]
        for (x, y) in l2: E.e(f"v_permlane16_swap_b32 v{x}, v{y}")
        for (x, y) in l2: E.e(f"{op} v{x}, v{x}, v{y}")
        for k, (x, y) in enumerate(l2):
            E.ds(f"ds_write_b32 v{va}, v{x} offset:{k*1024}")
    def stat_read(self, op3, op, regs, region, tmps, va):
        E = self.E
        E.e(f"v_and_b32 v{va}, 15, v{V_LANE}")
        E.e(f"v_lshlrev_b32 v{va}, 4, v{va}")
        E.e(f"s_lshl_b32 s{S_T2}, s{S_I}, 11"); E.e(f"s_add_u32 s{S_T2}, s{S_T2}, {LDS_CELL + region*4096}")
        E.e(f"v_add_u32 v{va}, s{S_T2}, v{va}")
        for g in range(5):
            E.ds(f"ds_read_b128 {vr(tmps[g])}, v{va} offset:{g*256}", range(tmps[g], tmps[g] + 4))
        for g in range(5):
            v = tmps[g]
            E.need(range(v, v + 4))
            if op3:
                E.e(f"{op} v{regs[g]}, v{v}, v{v+1}")
                E.e(f"{op3} v{regs[g]}, v{regs[g]}, v{v+2}, v{v+3}")
            else:
                E.e(f"v_pk_add_f32 {vr(v,2)}, {vr(v,2)}, {vr(v+2,2)}")
                E.e(f"{op} v{regs[g]}, v{v}, v{v+1}")
    def wr_addr(self, dst): self.E.e(f"v_add_u32 v{dst}, s{S_WB}, v{V_BA}")
    def pack(self, base, p, t):
        E = self.E
        a = acc_reg(base, p, 0, t); b = acc_reg(base, p, 1, t)
        E.e(f"v_cvt_pk_bf16_f32 v{a}, v{a}, v{a+1}")
        E.e(f"v_cvt_pk_bf16_f32 v{a+1}, v{a+2}, v{a+3}")
        E.e(f"v_cvt_pk_bf16_f32 v{a+2}, v{b}, v{b+1}")
        E.e(f"v_cvt_pk_bf16_f32 v{a+3}, v{b+2}, v{b+3}")
        return a

    def max_ins(self, base, init):
        mem = [[acc_reg(base, p, e, t) + r for p in range(2) for e in range(2) for r in range(4)] for t in range(5)]
        out = []
        for k in range(0, 16, 2):
            for t in range(5):
                if k == 0 and init: out.append(f"v_max_f32 v{V_M+t}, v{mem[t][0]}, v{mem[t][1]}")
                else: out.append(f"v_max3_f32 v{V_M+t}, v{V_M+t}, v{mem[t][k]}, v{mem[t][k+1]}")
        return out
    def exp_frag(self, base, p, t, ts, s, first):
        regs = [acc_reg(base, p, e, t) + r for e in range(2) for r in range(4)]
        o = [f"v_fma_f32 v{r}, v{r}, s{S_C}, -v{V_M+t}" for r in regs]
        o += [f"v_exp_f32 v{r}, v{r}" for r in regs]
        o.append(f"v_pk_add_f32 {vr(ts,2)}, {vr(regs[0],2)}, {vr(regs[2],2)}")
        o.append(f"v_pk_add_f32 {vr(ts+2,2)}, {vr(regs[4],2)}, {vr(regs[6],2)}")
        a, b = regs[0], regs[4]
        o += [f"v_cvt_pk_bf16_f32 v{a}, v{a}, v{a+1}", f"v_cvt_pk_bf16_f32 v{a+1}, v{a+2}, v{a+3}",
              f"v_cvt_pk_bf16_f32 v{a+2}, v{b}, v{b+1}", f"v_cvt_pk_bf16_f32 v{a+3}, v{b+2}, v{b+3}"]
        o.append(f"v_pk_add_f32 {vr(ts,2)}, {vr(ts,2)}, {vr(ts+2,2)}")
        if first: o.append(f"v_add_f32 v{s}, v{ts}, v{ts+1}")
        else:
            o.append(f"v_add_f32 v{s}, v{s}, v{ts}")
            o.append(f"v_add_f32 v{s}, v{s}, v{ts+1}")
        return o
    def softmax(self, ty):
        E = self.E; opt = self.opt
        M = [V_M + t for t in range(5)]
        for i in self.max_ins(ACC2, False): E.e(i)
        self.stat_write("v_max_f32", M, 0, AF + 16, AF + 17)
        self.barrier()
        self.stat_read("v_max3_f32", "v_max_f32", M, 0, [BF + 4 * k for k in range(5)], AF + 17)
        for t in range(5): E.e(f"v_mul_f32 v{M[t]}, s{S_C}, v{M[t]}")
        S = [BF + 32 + t for t in range(5)]
        vw = BF + 37
        self.wr_addr(vw)
        for i, (p, t) in enumerate(FR):
            for ins in self.exp_frag(ACC, p, t, AF + 20 + 4 * (i & 1), S[t], p == 0): E.e(ins)
            E.ds(f"ds_write_b128 v{vw}, {vr(acc_reg(ACC,p,0,t))} offset:{(p*5+t)*1024}")
        nex = opt.nex if ty == 'A' else opt.nexb
        for i, (p, t) in enumerate(FR[:nex]):
            for ins in self.exp_frag(ACC2, p, t, AF + 20 + 4 * (i & 1), S[t], False): E.e(ins)
        self.barrier()
        hid = []
        for i, (p, t) in enumerate(FR[nex:]):
            ts = 252 if (i == 0 and nex == 0) else acc_reg(ACC2, FR[0][0], 1, FR[0][1])
            if i == 0 and nex == 0:
                pass
            hid += self.exp_frag(ACC2, p, t, ts, S[t], False)
        def fin(): self.stat_write("v_add_f32", S, 1, BF + 38, BF + 39)
        return hid, fin, vw

    def o_write(self):
        E = self.E
        VS = V_M
        vw = V_T0 + 1
        self.wr_addr(vw)
        for t in range(5):
            for p in range(2):
                regs = [acc_reg(ACC, p, e, t) + r for e in range(2) for r in range(4)]
                for r in regs: E.e(f"v_mul_f32 v{r}, v{r}, v{VS+t}")
                d = self.pack(ACC, p, t)
                E.ds(f"ds_write_b128 v{vw}, {vr(d)} offset:{(p*5+t)*1024}")
    def rinv(self):
        E = self.E
        M = [V_M + t for t in range(5)]
        self.stat_read(None, "v_add_f32", M, 1, [ACC2 + 60 + 4 * k for k in range(5)], V_T0 + 2)
        for t in range(5): E.e(f"v_rcp_f32 v{M[t]}, v{M[t]}")

    def part_store(self, ty, fl="sc1"):
        E = self.E
        va = V_T0 + 3
        E.e(f"v_lshlrev_b32 v{va}, 4, v{V_LANE}")
        for (p, t) in FR:
            d = self.pack(ACC, p, t)
            s = E.stmp()
            E.e(f"s_mov_b32 s{s}, {(p*5+t)*1024}")
            E.vm(f"buffer_store_dwordx4 {vr(d)}, v{va}, {sr(SRD[ty+'P'])}, s{s} offen {fl}", "ST")
        E.e("s_nop 1")

    def part_store_t(self, ty, t):
        E = self.E
        va = V_T0 + 3
        if t == 0: E.e(f"v_lshlrev_b32 v{va}, 4, v{V_LANE}")
        for p in range(2):
            d = self.pack(ACC, p, t)
            s = E.stmp()
            E.e(f"s_mov_b32 s{s}, {(p*5+t)*1024}")
            E.vm(f"buffer_store_dwordx4 {vr(d)}, v{va}, {sr(SRD[ty+'P'])}, s{s} offen sc1", "ST")
    def part_pack(self):
        E = self.E
        for i, (p, t) in enumerate(FR):
            a = acc_reg(ACC, p, 0, t); b = acc_reg(ACC, p, 1, t); d = ACC2 + 40 + 4 * i
            E.e(f"v_cvt_pk_bf16_f32 v{d}, v{a}, v{a+1}")
            E.e(f"v_cvt_pk_bf16_f32 v{d+1}, v{a+2}, v{a+3}")
            E.e(f"v_cvt_pk_bf16_f32 v{d+2}, v{b}, v{b+1}")
            E.e(f"v_cvt_pk_bf16_f32 v{d+3}, v{b+2}, v{b+3}")
    def part_store1(self, ty, i):
        E = self.E
        va = V_T0 + 3
        if i == 0: E.e(f"v_lshlrev_b32 v{va}, 4, v{V_LANE}")
        s = E.stmp()
        E.e(f"s_mov_b32 s{s}, {i*1024}")
        E.vm(f"buffer_store_dwordx4 {vr(ACC2+40+4*i)}, v{va}, {sr(SRD[ty+'P'])}, s{s} offen sc1", "ST")

    def cnt_addr(self, ty, ws):
        E = self.E
        if ws:
            E.e(f"s_mul_i32 s{S_T2}, s{S_B}, {self.opt.wss}"); E.e(f"s_add_u32 s{S_T2}, s{S_T2}, {WSC}")
            return f"s[{P_WS}:{P_WS+1}]", 0
        E.e(f"s_lshl_b32 s{S_T2}, s{S_B}, 2")
        return f"s[{P_DBG}:{P_DBG+1}]", (0 if ty == "A" else 128)
    def signal(self, ty, lab, ws=False):
        E = self.E
        E.e(f"s_cmp_lg_u32 s{S_W}, 0"); E.e(f"s_cbranch_scc1 {lab}")
        base, imm = self.cnt_addr(ty, ws)
        E.e(f"v_mov_b32 v{V_T0+2}, s{S_T2}"); E.e(f"v_mov_b32 v{V_T0+3}, 1")
        E.e("s_mov_b64 exec, 1")
        E.e(f"global_atomic_add v{V_T0+2}, v{V_T0+3}, {base} offset:{imm} sc1")
        E.e("s_mov_b64 exec, -1")
        E.lab(lab)
    def cnt_reset(self, lab):
        E = self.E
        E.e(f"s_or_b32 s{S_T2}, s{S_W}, s{S_JX}"); E.e(f"s_cmp_lg_u32 s{S_T2}, 0"); E.e(f"s_cbranch_scc1 {lab}")
        base, imm = self.cnt_addr("A", True)
        E.e(f"v_mov_b32 v{V_T0+2}, s{S_T2}"); E.e(f"v_mov_b32 v{V_T0+3}, 0")
        E.e("s_mov_b64 exec, 1")
        E.e(f"global_store_dword v{V_T0+2}, v{V_T0+3}, {base} sc1")
        E.e("s_mov_b64 exec, -1")
        E.lab(lab)

    def early_barrier(self):
        self.E.need_tag("B"); self.E.e("s_barrier")

    def round(self, ty, n0, first, other):
        E = self.E; opt = self.opt
        last = not first
        H = [{}]
        def add(idx, f): H[0].setdefault(idx, []).append(f)
        def spread(ins, i0, i1):
            n = len(ins)
            for k, x in enumerate(ins): add(i0 + (k * (i1 - i0)) // n, (lambda x=x: E.e(x)))
        def tr4(nk, keyf, cin0="0"):
            return [[(acc_reg(ACC, u >> 1, u & 1, t), u, keyf(k, t), cin0 if k == 0 else None) for t in range(5) for u in range(4)] for k in range(nk)]
        add(280 - 60, self.q_addr)
        add(280 - opt.eb, self.early_barrier)
        if last and not opt.dst: add(100, lambda: E.vm_need("ST"))
        if last and opt.dst == 2:
            for i in range(10): add(opt.dst0 + i * opt.dsts, (lambda i=i: self.part_store1(other, i)))
        for t in range(opt.qin): add(260 + 4 * t + 3 + 9, (lambda t=t: self.q_write_t(t)))
        pre = ((lambda: self.part_store(other, "" if opt.wb else "sc1")) if not opt.dst else self.part_pack) if last else None
        fence = None
        if first and opt.wpf > 1: add(opt.wpf, self.wo_touch)
        if first and opt.fstart:
            def pre():
                self.site_rf(0, 1)
                self.untracked = True
                E.e(f"s_cmp_lt_u32 s{S_W}, 4"); E.e(f"s_cbranch_scc1 L_xb{self.prog}")
                self.x_load(ty, t0=V_M)
                E.lab(f"L_xb{self.prog}")
                self.untracked = False
                E.vq.append("@X")
            def xw2():
                E.vm_need("@X")
                E.e(f"s_cmp_lt_u32 s{S_W}, 4"); E.e(f"s_cbranch_scc1 L_xt{self.prog}")
                for f in range(10): E.e(self.xw_ins(V_T0, f))
                E.lab(f"L_xt{self.prog}")
            def xb2():
                E.drain(); E.e("s_barrier"); self.flags.add("x2")
            add(opt.xw2, xw2); add(opt.xb2, xb2)
            fence = (40, "x2")
        self.gemm(n0, tr4(14, lambda k, t: k * 5 + t), self.ba_g, H[0], pre=pre, fence=fence)
        self.stamp()
        for t in range(opt.qin, 5): self.q_write_t(t)
        self.barrier()
        if last and not opt.dst: self.signal(other, f"L_sig{self.prog}a")
        if first and opt.wsc: self.cnt_reset(f"L_rst{self.prog}")
        nK = n0 + 14
        steps = []
        for k in range(16):
            hf, c, p = k >> 3, (k >> 1) & 3, k & 1
            acc = ACC if hf == 0 else ACC2
            steps.append([(acc_reg(acc, p, u, t), u * 2 + e, (hf, (2 * c + e) * 5 + t), "0" if (c == 0 and e == 0) else None)
                          for e in range(2) for t in range(5) for u in range(2)])
        ba = lambda k: (V_BH, k[1] * 1024)
        H[0] = {}
        spread(self.max_ins(ACC, True), 175, 255)
        if last and opt.dst == 1:
            for i in range(10): add(opt.dst0 + i * opt.dsts, (lambda i=i: self.part_store1(other, i)))
        if last and opt.dst: add(300, lambda: E.vm_need("ST"))
        self.gemm(nK, steps, ba, H[0])
        self.stamp()
        if last and not opt.dst: self.flag_load(other, AF + 28, 255)
        hid, fin, vw = self.softmax(ty)
        if last and opt.dst: self.signal(other, f"L_sig{self.prog}a")
        nV = nK + 16
        H[0] = {}
        self.flags.discard("p2")
        look = 32
        e0 = 160 - look + look // 4
        spread(hid, 2, e0 - 14)
        add(e0 - 12, fin)
        add(e0, self.early_barrier)
        span = look - look // 4 - 2
        for i, (p, t) in enumerate(FR):
            add(e0 + (i * (span // 2)) // 10, (lambda p=p, t=t: E.ds(f"ds_write_b128 v{vw}, {vr(acc_reg(ACC2,p,0,t))} offset:{(p*5+t)*1024}", (), "W")))
        def bar2():
            E.need_tag("W"); E.e("s_barrier"); self.flags.add("p2")
        add(e0 + span, bar2)
        add(220, self.rinv)
        add(320 - look + look // 4, self.early_barrier)
        xpv = first and ty in opt.xpv
        if xpv:
            for t in range(5): add(opt.xp0 + t * opt.xps, (lambda t=t: self.x_load(other, t)))
        if last: add(200, self.reduce_setup)
        if last: add(250, lambda: self.flag_check(other, f"L_f{self.prog}"))
        if last and opt.dst: add(300, lambda: self.flag_load(other, V_T0, 255))
        self.gemm(nV, tr4(16, lambda k, t: (k >> 3, (k & 7) * 5 + t)), ba, H[0], fence=(40, "p2"), ns=8)
        self.stamp()
        self.o_write()
        self.barrier()
        nO = nV + 16
        H[0] = {}
        if first:
            for t in range(0 if xpv else 5): add(opt.xop + t * opt.xops, (lambda t=t: self.x_load(other, t, " nt" if opt.x2nt else "")))
            add(320 - 60, lambda: self.x_addr(V_T0))
            add(320 - 30, self.early_barrier)
            for f in range(10): add(320 - 30 + f, (lambda f=f: self.x_write1(V_T0, f)))
        done = []
        def cb():
            for t in range(5):
                idx = self.tile_done[t] + opt.td
                if idx < 320:
                    if opt.td < 8: add(idx, lambda: E.e(f"s_nop {7 - opt.td}"))
                    add(idx, (lambda t=t: self.part_store_t(ty, t))); done.append(t)
        self.gemm(nO, tr4(16, lambda k, t: k * 5 + t), self.ba_g, H[0], merge=cb if (last and opt.mo) else False)
        if first: self.barrier()
        else:
            self.stamp()
            for t in range(5):
                if t not in done: self.part_store_t(ty, t)
        return nO + 16

    RO = 112
    def poll(self, ty, lab, allw, ws=False):
        E = self.E
        if not allw:
            E.e(f"s_cmp_lg_u32 s{S_W}, 0"); E.e(f"s_cbranch_scc1 {lab}go")
        base, imm = self.cnt_addr(ty, ws)
        E.e(f"v_mov_b32 v116, s{S_T2}")
        E.lab(f"{lab}poll")
        E.e("s_mov_b64 exec, 1")
        E.e(f"global_load_dword v117, v116, {base} offset:{imm} sc1")
        E.e("s_mov_b64 exec, -1")
        E.e("s_waitcnt vmcnt(0)")
        E.e(f"v_readfirstlane_b32 s{S_T2}, v117")
        E.e("s_nop 3")
        E.e(f"s_cmp_ge_u32 s{S_T2}, 8")
        E.e(f"s_cbranch_scc1 {lab}go")
        E.e(f"s_sleep {self.opt.slp}")
        E.e(f"s_branch {lab}poll")
        E.lab(f"{lab}go")
        if not allw: E.e("s_barrier")
    def flag_load(self, ty, va, vd):
        E = self.E
        self.fd = vd
        lab = f"L_fl{self.prog}"
        E.e(f"s_cmp_lg_u32 s{S_W}, 0"); E.e(f"s_cbranch_scc1 {lab}")
        base, imm = self.cnt_addr(ty, False)
        E.e(f"v_mov_b32 v{va}, s{S_T2}")
        E.e("s_mov_b64 exec, 1")
        E.e(f"global_load_dword v{vd}, v{va}, {base} offset:{imm} sc1")
        E.e("s_mov_b64 exec, -1")
        E.lab(lab)
        E.vq.append("@F")
    def flag_check(self, ty, lab):
        E = self.E
        E.vm_need("@F")
        E.e(f"s_cmp_lg_u32 s{S_W}, 0"); E.e(f"s_cbranch_scc1 {lab}go")
        E.e(f"v_readfirstlane_b32 s{S_T2}, v{self.fd}")
        E.e("s_nop 3")
        E.e(f"s_cmp_ge_u32 s{S_T2}, 8")
        E.e(f"s_cbranch_scc1 {lab}go")
        self.poll(ty, lab, True)
    def red_loads(self, ty, lab):
        E = self.E
        br = 0 if ty == "A" else 1
        E.e(f"s_add_u32 s{S_T2}, s{S_B}, {br*32}"); E.e(f"s_mul_i32 s{S_T2}, s{S_T2}, {8*PART}")
        E.e(f"s_add_u32 s16, s{P_WS}, s{S_T2}"); E.e(f"s_addc_u32 s17, s{P_WS+1}, 0"); E.e(f"s_mov_b32 s18, {8*PART}"); E.e("s_mov_b32 s19, 0x20000")
        for ps in (1, 0):
            base = 120 if ps == 0 else 80
            if ps == 1:
                E.e(f"s_cmp_lg_u32 s{S_W}, 7"); E.e(f"s_cbranch_scc1 {lab}p1")
            E.e(f"s_mov_b32 s{S_T2}, 0")
            for j in range(8):
                t = f"buffer_load_dwordx4 {vr(base+4*j)}, v{self.RO+ps}, s[16:19], s{S_T2} offen sc1"
                if ps == 1: E.e(t)
                else: E.vm(t, ("RL", j))
                if j < 7: E.e(f"s_add_u32 s{S_T2}, s{S_T2}, {PART}")
            if ps == 1: E.lab(f"{lab}p1")
    def red_sum(self, ty, lab):
        E = self.E
        br = 0 if ty == "A" else 1
        A = BF
        for ps in (1, 0):
            base = 120 if ps == 0 else 80
            if ps == 1:
                E.vm_need(("RL", 0))
                E.e(f"s_cmp_lg_u32 s{S_W}, 7"); E.e(f"s_cbranch_scc1 {lab}p2")
            for j in range(8):
                if ps == 0: E.vm_need(("RL", j))
                for k in range(4):
                    r = base + 4 * j + k
                    o = 0 if j == 0 else 8
                    E.e(f"v_lshlrev_b32 v{A+o+2*k}, 16, v{r}"); E.e(f"v_and_b32 v{A+o+1+2*k}, 0xffff0000, v{r}")
                if j:
                    for k in range(4): E.e(f"v_pk_add_f32 {vr(A+2*k,2)}, {vr(A+2*k,2)}, {vr(A+8+2*k,2)}")
            d = A + 16 + 4 * ps
            for k in range(4): E.e(f"v_cvt_pk_bf16_f32 v{d+k}, v{A+2*k}, v{A+1+2*k}")
            for h in range(2):
                t = f"buffer_store_dwordx2 {vr(d+2*h,2)}, v{self.RO+2+ps}, s[20:23], 0 offen offset:{br*896+32*h}"
                if ps == 1: E.e(t)
                else: E.vm(t, "OS")
            if ps == 1: E.lab(f"{lab}p2")
    def reduce_setup(self):
        E = self.E; R = self.RO
        E.e(f"s_mul_i32 s{S_T2}, s{S_B}, {80*1792}")
        E.e(f"s_add_u32 s20, s{P_OUT}, s{S_T2}"); E.e(f"s_addc_u32 s21, s{P_OUT+1}, 0"); E.e(f"s_mov_b32 s22, {80*1792}"); E.e("s_mov_b32 s23, 0x20000")
        E.e(f"s_mul_i32 s{S_T2}, s{S_JX}, 560")
        E.e(f"s_lshl_b32 s{S_T3}, s{S_W}, 6"); E.e(f"s_add_u32 s{S_T3}, s{S_T3}, s{S_T2}")
        E.e(f"s_add_u32 s{S_T2}, s{S_T2}, 512")
        E.e(f"v_add_u32 v104, s{S_T3}, v{V_LANE}")
        E.e(f"v_add_u32 v105, s{S_T2}, v{V_LANE}")
        for ps in range(2):
            it = 104 + ps
            E.e(f"v_lshlrev_b32 v{R+ps}, 4, v{it}")
            E.e(f"v_lshrrev_b32 v106, 6, v{it}")
            E.e(f"v_mul_u32_u24 v107, 205, v106"); E.e("v_lshrrev_b32 v107, 10, v107")
            E.e(f"v_mul_u32_u24 v108, 5, v107"); E.e("v_sub_u32 v108, v106, v108")
            E.e(f"v_and_b32 v109, 15, v{it}")
            E.e("v_lshl_add_u32 v108, v108, 4, v109")
            E.e("v_mul_u32_u24 v108, 1792, v108")
            E.e("v_lshl_add_u32 v108, v107, 6, v108")
            E.e(f"v_bfe_u32 v109, v{it}, 4, 2")
            E.e(f"v_lshl_add_u32 v{R+2+ps}, v109, 3, v108")
        E.e(f"v_cmp_gt_u32 vcc, 48, v{V_LANE}")
        E.e("v_mov_b32 v106, 0x7ff00000")
        E.e("s_nop 1")
        E.e(f"v_cndmask_b32 v{R+1}, v106, v{R+1}, vcc")
        E.e(f"v_cndmask_b32 v{R+3}, v106, v{R+3}, vcc")

    def srd(self, name, ptr, off_s, total, zero_w7=False):
        E = self.E; d = SRD[name]
        E.e(f"s_add_u32 s{d}, s{S_PTR+2*ptr}, s{off_s}")
        E.e(f"s_addc_u32 s{d+1}, s{S_PTR+2*ptr+1}, 0")
        E.e(f"s_sub_u32 s{d+2}, {total}, s{off_s}")
        E.e(f"s_mov_b32 s{d+3}, 0x20000")
        if zero_w7:
            E.e(f"s_cmp_eq_u32 s{S_W}, 7")
            E.e(f"s_cselect_b32 s{d+2}, 0, s{d+2}")

    def setup(self):
        E = self.E
        E.e("s_cmp_ge_u32 s2, 256"); E.e("s_cbranch_scc1 L_exit")
        E.e(f"s_load_dwordx16 s[{S_PTR}:{S_PTR+15}], s[0:1], 0")
        E.e(f"s_load_dwordx8 s[{S_PTR+16}:{S_PTR+23}], s[0:1], 64")
        E.e(f"s_load_dwordx2 s[{S_PTR+24}:{S_PTR+25}], s[0:1], 96")
        E.e(f"v_lshrrev_b32 v1, 6, v0")
        E.e(f"v_and_b32 v{V_LANE}, 63, v0")
        E.e(f"v_readfirstlane_b32 s{S_W}, v1")
        L = V_LANE
        E.e(f"v_and_b32 v1, 7, v{L}")
        E.e(f"v_lshrrev_b32 v2, 4, v{L}")
        E.e(f"v_lshlrev_b32 v3, 1, v2")
        E.e(f"v_xor_b32 v1, v1, v3")
        E.e(f"v_lshlrev_b32 v1, 4, v1")
        E.e(f"v_lshrrev_b32 v4, 3, v{L}")
        E.e(f"v_lshl_add_u32 v{V_LPKV}, v4, 9, v1")
        E.e(f"v_mul_u32_u24 v5, 896, v4")
        E.e(f"v_add_u32 v{V_LPWO}, v5, v1")
        E.e(f"v_and_b32 v5, 3, v4")
        E.e(f"v_lshrrev_b32 v6, 2, v4")
        E.e(f"v_lshl_add_u32 v5, v6, 3, v5")
        E.e(f"v_lshl_add_u32 v{V_LPWQ}, v5, 13, v1")
        E.e(f"s_lshl_b32 s{S_RING0}, s{S_W}, 13")
        E.e(f"s_add_u32 s{S_RING0}, s{S_RING0}, {LDS_RING}")
        E.e(f"s_add_u32 s{S_RING1}, s{S_RING0}, 4096")
        E.e(f"s_lshr_b32 s{S_I}, s{S_W}, 2")
        E.e(f"s_and_b32 s{S_J}, s{S_W}, 3")
        E.e(f"s_lshl_b32 s{S_GOFF}, s{S_I}, 15")
        E.e(f"v_bfe_u32 v5, v{L}, 2, 3")
        E.e(f"v_lshrrev_b32 v6, 1, v5")
        E.e(f"v_lshlrev_b32 v6, 1, v6")
        E.e(f"v_bfe_u32 v7, v{L}, 1, 1")
        E.e(f"v_xor_b32 v6, v6, v7")
        E.e(f"v_lshlrev_b32 v6, 4, v6")
        E.e(f"v_lshl_add_u32 v6, v5, 7, v6")
        E.e(f"v_and_b32 v8, 1, v{L}")
        E.e(f"v_lshl_add_u32 v6, v8, 3, v6")
        E.e(f"v_lshrrev_b32 v9, 5, v{L}")
        E.e(f"v_lshl_add_u32 v6, v9, 10, v6")
        E.e(f"v_add_u32 v{V_TR4}, s{S_RING0}, v6")
        for t in range(1, 4): E.e(f"v_xor_b32 v{V_TR4+t}, {t<<5}, v{V_TR4}")
        E.e(f"v_and_b32 v5, 15, v{L}")
        E.e(f"v_and_b32 v6, 6, v{L}")
        E.e(f"v_xor_b32 v6, v6, v2")
        E.e(f"v_lshlrev_b32 v6, 4, v6")
        E.e(f"v_lshl_add_u32 v6, v5, 7, v6")
        E.e(f"v_add_u32 v{V_AK}, s{S_RING0}, v6")
        E.e(f"v_xor_b32 v{V_AK+1}, 64, v{V_AK}")
        E.e(f"v_xor_b32 v6, v5, v3")
        E.e(f"v_lshl_add_u32 v6, v2, 4, v6")
        E.e(f"v_lshlrev_b32 v{V_BA}, 4, v6")
        E.e(f"v_add_u32 v{V_BB}, 40960, v{V_BA}")
        E.e(f"s_mul_i32 s{S_T0}, s{S_I}, 40960")
        E.e(f"v_add_u32 v{V_BH}, s{S_T0}, v{V_BA}")
        E.e(f"s_mul_i32 s{S_WB}, s{S_W}, 10240")
        E.e(f"s_mov_b32 s{S_C}, 0x3db8aa3b")
        J, B = S_JX, S_B
        E.e(f"s_and_b32 s{J}, s2, 7"); E.e(f"s_lshr_b32 s{B}, s2, 3")
        T = S_T0
        if self.opt.cpf:
            E.e(f"s_cmp_lg_u32 s{S_W}, 7"); E.e("s_cbranch_scc1 L_nocpf")
            E.e("s_getpc_b64 s[100:101]")
            E.e(f"v_and_b32 v11, 31, v{L}"); E.e("v_lshlrev_b32 v11, 7, v11")
            E.e(f"s_lshl_b32 s{S_T0}, s{B}, 12"); E.e(f"v_add_u32 v11, s{S_T0}, v11")
            E.e(f"v_min_u32 v11, {self.opt.cpf * 1024}, v11")
            E.e("global_load_dword v255, v11, s[100:101]")
            E.lab("L_nocpf")
        E.e(f"s_lshr_b32 s{T}, s{B}, 1")
        for _ in range(2):
            E.e(f"s_sub_u32 s{T+1}, s{T}, 7"); E.e(f"s_cmp_ge_u32 s{T}, 7"); E.e(f"s_cselect_b32 s{T}, s{T+1}, s{T}")
        for kp in range(7):
            E.e(f"s_add_u32 s{T+1}, s{T}, {kp}"); E.e(f"s_sub_u32 s{T+2}, s{T+1}, 7"); E.e(f"s_cmp_ge_u32 s{T+1}, 7")
            E.e(f"s_cselect_b32 s{T+1}, s{T+2}, s{T+1}"); E.e(f"s_lshl_b32 s{S_ROT+kp}, s{T+1}, 19")
        E.e(f"s_add_u32 s{T+1}, s{T}, s{S_W}"); E.e(f"s_sub_u32 s{T+2}, s{T+1}, 7"); E.e(f"s_cmp_ge_u32 s{T+1}, 7")
        E.e(f"s_cselect_b32 s{T+1}, s{T+2}, s{T+1}"); E.e(f"s_lshl_b32 s99, s{T+1}, 7")
        E.e(f"s_mul_i32 s{S_WOPF}, s{B}, {16*896}")
        E.e("s_waitcnt lgkmcnt(0)")
        for ty, pb in (("A", 0), ("B", 5)):
            E.e(f"s_mul_i32 s{T}, s{B}, 71680"); E.e(f"s_add_u32 s{T}, s{T}, s99")
            self.srd(ty + "X", pb + 0, T, 32 * 71680, True)
            E.e(f"s_lshl_b32 s{T+1}, s{S_W}, 7")
            E.e(f"s_lshl_b32 s{T}, s{J}, 10"); E.e(f"s_add_u32 s{T}, s{T}, s{T+1}")
            self.srd(ty + "WQ", pb + 3, T, 448 * 8192)
            E.e(f"s_mul_i32 s{T}, s{J}, {512*896}"); E.e(f"s_add_u32 s{T}, s{T}, s{T+1}")
            self.srd(ty + "WO", pb + 4, T, 4096 * 896, True)
            if ty == "A":
                tot = 32 * 8 * 262144
                E.e(f"s_lshl_b32 s{T+2}, s2, 18"); E.e(f"s_lshl_b32 s{T}, s{S_I}, 13")
            else:
                tot = 32 * 16 * 262144
                E.e(f"s_lshl_b32 s{T+2}, s2, 19"); E.e(f"s_lshl_b32 s{T}, s{S_I}, 18")
            E.e(f"s_add_u32 s{T+2}, s{T+2}, s{T}")
            E.e(f"s_lshl_b32 s{T}, s{S_J}, 15"); E.e(f"s_add_u32 s{T}, s{T}, s{T+2}")
            self.srd(ty + "K", pb + 1, T, tot)
            E.e(f"s_lshl_b32 s{T}, s{S_J}, 7"); E.e(f"s_add_u32 s{T}, s{T}, s{T+2}")
            self.srd(ty + "V", pb + 2, T, tot)
            br = 0 if ty == "A" else 1
            E.e(f"s_add_u32 s{T}, s2, {br*256}"); E.e(f"s_mul_i32 s{T}, s{T}, {PART}"); E.e(f"s_add_u32 s{T}, s{T}, s{S_WB}")
            self.srd(ty + "P", 12, T, 512 * PART, True)
        E.e(f"s_lshr_b32 s{T}, s{B}, 1"); E.e(f"s_add_u32 s{T}, s{T}, s{J}"); E.e(f"s_and_b32 s{T}, s{T}, 3")
        for c in range(4):
            E.e(f"s_add_u32 s{T+1}, s{T}, {c}"); E.e(f"s_and_b32 s{T+1}, s{T+1}, 3"); E.e(f"s_lshl_b32 s{S_KC+c}, s{T+1}, 7")
        E.e(f"s_sub_u32 s{T+1}, s{S_J}, s{T}"); E.e(f"s_and_b32 s{T+1}, s{T+1}, 3"); E.e(f"s_mul_i32 s{T+1}, s{T+1}, 10240")
        E.e(f"s_mul_i32 s{S_WB_Q}, s{S_I}, 40960"); E.e(f"s_add_u32 s{S_WB_Q}, s{S_WB_Q}, s{T+1}")
        self.nst = 0
        if self.opt.stamps:
            E.e(f"v_mov_b32 v{V_ST}, 0")
            self.stamp()
            E.e(f"s_memrealtime s[{S_T2}:{S_T3}]"); E.e("s_waitcnt lgkmcnt(0)"); E.e(f"v_writelane_b32 v{V_ST}, s{S_T2}, 62")
        if self.opt.prio:
            E.e(f"s_cmp_ge_u32 s{S_W}, 4"); E.e("s_cbranch_scc0 L_noprio"); E.e("s_setprio 1"); E.lab("L_noprio")
        E.e(f"s_and_b32 s{T}, s{B}, 1"); E.e(f"s_cmp_eq_u32 s{T}, 0")
        E.e("s_cbranch_scc0 L_progBA")

    def wo_touch(self):
        E = self.E
        E.e(f"v_and_b32 v{V_T0+3}, 15, v{V_LANE}")
        E.e(f"v_mul_u32_u24 v{V_T0+3}, 896, v{V_T0+3}")
        for tt in "AB": E.vm(f"buffer_load_dword v255, v{V_T0+3}, {sr(SRD[tt+'WO'])}, s{S_WOPF} offen", "T")

    def program(self, t1, t2):
        E = self.E
        self.prog = t1 + t2
        E.lab(f"L_prog{self.prog}")
        E.q = []; E.vq = []
        self.flags = set()
        self.st = round_stream(t1) + round_stream(t2)
        self.plan_units()
        self.nst = 1
        fs = self.opt.fstart
        if fs:
            self.ufree = 2; self.pump()
            E.e("s_barrier")
            self.untracked = True
            E.e(f"s_cmp_ge_u32 s{S_W}, 4"); E.e(f"s_cbranch_scc1 L_xa{self.prog}")
            self.x_load(t1)
            E.lab(f"L_xa{self.prog}")
            self.untracked = False
            self.ufree = 4; self.pump()
            self.x_addr(V_T0)
            for unit in range(2): self.site_rd(0, unit)
            E.e(f"s_cmp_ge_u32 s{S_W}, 4"); E.e(f"s_cbranch_scc1 L_xs{self.prog}")
            for f in range(10): E.e(self.xw_ins(V_T0, f))
            E.lab(f"L_xs{self.prog}")
        else:
            self.pump()
            self.x_load(t1)
            self.x_addr(V_T0)
            for unit in range(2):
                self.site_rd(0, unit); self.site_rf(0, unit)
            for f in range(10): self.x_write1(V_T0, f)
        if self.opt.wpf == 1: self.wo_touch()
        self.barrier()
        n = self.round(t1, 0, True, t2)
        n = self.round(t2, n, False, t1)
        assert n == len(self.st)
        l1, l2 = f"L_r{self.prog}1", f"L_r{self.prog}2"
        self.red_loads(t1, l1)
        E.vm_need("ST")
        self.barrier()
        self.signal(t2, f"L_sig{self.prog}b", self.opt.wsc)
        self.red_sum(t1, l1)
        self.stamp()
        self.poll(t2, l2, False, self.opt.wsc)
        self.stamp()
        self.red_loads(t2, l2)
        self.red_sum(t2, l2)
        if self.opt.stamps:
            E.e("s_waitcnt vmcnt(0)")
            self.stamp()
            E.e(f"s_memrealtime s[{S_T2}:{S_T3}]"); E.e("s_waitcnt lgkmcnt(0)"); E.e(f"v_writelane_b32 v{V_ST}, s{S_T2}, 63")
            E.e(f"s_lshl_b32 s{S_T0}, s2, 3"); E.e(f"s_add_u32 s{S_T0}, s{S_T0}, s{S_W}"); E.e(f"s_lshl_b32 s{S_T0}, s{S_T0}, 8")
            E.e(f"s_add_u32 s{S_T0}, s{S_T0}, {64<<20}")
            E.e(f"v_lshlrev_b32 v0, 2, v{V_LANE}"); E.e(f"v_add_u32 v0, s{S_T0}, v0")
            E.e(f"global_store_dword v0, v{V_ST}, s[{P_WS}:{P_WS+1}]")
        E.e("s_endpgm")

    def build(self):
        E = self.E
        k = NAME + "_kernel"
        head = HDR + f"; @launch grid=(256,1,1) block=(512,1,1) lds={LDS_TOTAL}\n" + '.amdgcn_target "amdgcn-amd-amdhsa--gfx950"\n'
        E.L += [".text", f".globl {k}", ".p2align 8", f".type {k},@function", f"{k}:"]
        self.upend = None
        self.setup()
        self.program("A", "B")
        E.lab("L_exit"); E.e("s_endpgm")
        self.program("B", "A")
        tail = ['.section .rodata,"a"', ".p2align 6", f".amdhsa_kernel {k}", "  .amdhsa_next_free_vgpr 256", "  .amdhsa_next_free_sgpr 102",
                "  .amdhsa_accum_offset 256", "  .amdhsa_group_segment_fixed_size 0", "  .amdhsa_kernarg_size 104",
                "  .amdhsa_user_sgpr_count 2", "  .amdhsa_user_sgpr_kernarg_segment_ptr 1",
                "  .amdhsa_system_sgpr_workgroup_id_x 1", "  .amdhsa_float_denorm_mode_32 3", ".end_amdhsa_kernel"]
        return head + "\n".join(E.L + tail) + "\n"

def main():
    ap = argparse.ArgumentParser()
    ap.add_argument("-o", default=f"cdna_kernels/{NAME}.s")
    ap.add_argument("--stamps", action="store_true")
    ap.add_argument("--xpv", default="")
    for nm, d in (("wpf", 130), ("xpf", 0), ("wqnt", 0), ("prio", 0), ("s0", 1), ("s1", 6), ("s2", 8), ("s3", 13), ("sh0", 4), ("eb", 28),
                  ("nex", 5), ("wsc", 1), ("wss", 4352), ("slp", 4), ("td", 5), ("mo", 1), ("xp0", 172), ("xps", 20), ("fstart", 1), ("xw2", 70), ("xb2", 110), ("cpf", 0), ("nexb", 1), ("x1nt", 0), ("x2nt", 0), ("wb", 0), ("sh2", 0), ("d0", 1), ("d1", 3), ("d2", 5), ("dst", 0), ("dst0", 2), ("dsts", 1), ("xop", 15), ("xops", 40), ("qin", 2)):
        ap.add_argument("--" + nm, type=int, default=d)
    opt = ap.parse_args()
    assert opt.nex >= 1
    open(opt.o, "w").write(Gen(opt).build())
if __name__ == "__main__": main()
```

```python
import sys, argparse

NAME = "concat_heads__gqa_block_cached__mha_block_cached__near_ridge"
HDR = open("cdna_kernels/%s.s.ref" % NAME).read().split("; Override launch geometry")[0]

ACC, ACC2, BF, AF = 0, 80, 160, 200
V_LPKV, V_LPWQ, V_LPWO = 232, 233, 234
V_LANE = 235
V_TR4, V_AK = 236, 240
V_BA, V_BB, V_BH = 242, 243, 244
V_ST = 245
V_M = 246
V_T0 = 251
LDS_RING = 81920
LDS_CELL = 147456
LDS_TOTAL = 163840
S_W = 3
S_RING0, S_RING1 = 4, 5
S_C = 6
S_WOPF = 7
S_T0, S_T1, S_T2, S_T3 = 8, 9, 10, 11
S_WB = 12
S_GOFF = 13
S_I, S_J = 14, 15
SRD = {}
_s = 16
for ty in "AB":
    for nm in ("X", "WQ", "K", "V", "WO", "P"):
        SRD[ty + nm] = _s; _s += 4
S_PTR = 64
S_ROT = 90
S_JX, S_B = 97, 98
P_OUT, P_DBG, P_WS = S_PTR + 20, S_PTR + 22, S_PTR + 24
PART = 71680
WSC = 40 << 20
S_KC = 66
S_WB_Q = 70
S_WB_O = 71
S_PAR = 72
S_RO = 76

def vr(b, n=4): return f"v[{b}:{b+n-1}]"
def sr(b, n=4): return f"s[{b}:{b+n-1}]"

class Em:
    def __init__(self):
        self.L = []; self.q = []; self.vq = []; self.st = 0
    def e(self, s): self.L.append(s)
    def lab(self, s): self.L.append(s + ":")
    def ds(self, text, dst=(), tag=None):
        self.e(text); self.q.append((set(dst), tag))
    def _wait_idx(self, idx):
        if idx < 0: return
        n = min(len(self.q) - 1 - idx, 15)
        self.e(f"s_waitcnt lgkmcnt({n})")
        self.q = self.q[len(self.q) - n:] if n > 0 else []
    def need(self, regs):
        regs = set(regs); idx = -1
        for i, (d, t) in enumerate(self.q):
            if d & regs: idx = i
        self._wait_idx(idx)
    def need_tag(self, tag):
        idx = -1
        for i, (d, t) in enumerate(self.q):
            if t == tag: idx = i
        self._wait_idx(idx)
    def drain(self):
        self.e("s_waitcnt lgkmcnt(0)"); self.q = []
    def vm(self, text, tag=None):
        self.e(text); self.vq.append(tag)
    def vm_need(self, tag):
        idx = -1
        for i, t in enumerate(self.vq):
            if t == tag: idx = i
        if idx < 0: return
        rest = self.vq[idx + 1:]
        n = sum(1 for t in rest if not (isinstance(t, str) and t.startswith("@")))
        assert n <= 63
        self.e(f"s_waitcnt vmcnt({n})")
        self.vq = rest
    def stmp(self):
        self.st ^= 1
        return S_T0 + self.st

def acc_reg(base, p, e, t): return base + ((p * 2 + e) * 5 + t) * 4

def seg_offsets(seg, k):
    if seg == "WQ": return [(32 * (k & 1) + r) * 8192 for r in (0, 16, 4, 20)]
    if seg == "K":
        hf, p = k >> 3, k & 1
        return [(256 * hf + 32 * p + 8 * b) * 512 for b in range(4)]
    if seg == "V": return [(32 * k + 8 * b) * 512 for b in range(4)]
    if seg == "WO": return [(32 * (k & 1) + 8 * b) * 896 for b in range(4)]
    raise ValueError(seg)
SEG_LP = {"WQ": V_LPWQ, "K": V_LPKV, "V": V_LPKV, "WO": V_LPWO}
SEG_NT = {"WQ": "", "K": " nt", "V": " nt", "WO": ""}

def round_stream(ty):
    return ([(ty, "WQ", k) for k in range(14)] + [(ty, "K", k) for k in range(16)] +
            [(ty, "V", k) for k in range(16)] + [(ty, "WO", k) for k in range(16)])

FR = [(p, t) for p in range(2) for t in range(5)]

class Gen:
    def __init__(self, opt):
        self.opt = opt; self.E = Em(); self.nst = 0

    def stamp(self):
        if not self.opt.stamps: return
        E = self.E
        E.drain()
        E.e(f"s_memtime s[{S_T2}:{S_T3}]"); E.e("s_waitcnt lgkmcnt(0)")
        E.e(f"v_writelane_b32 v{V_ST}, s{S_T2}, {self.nst}")
        E.e(f"s_memrealtime s[{S_T2}:{S_T3}]"); E.e("s_waitcnt lgkmcnt(0)")
        E.e(f"v_writelane_b32 v{V_ST}, s{S_T2}, {self.nst + 30}")
        self.nst += 1
    def barrier(self):
        self.E.drain(); self.E.e("s_barrier"); self.stamp()
        self.release_shared()

    def shared(self, n): return n < len(self.st) and self.st[n][0] == "A" and self.st[n][1] in ("K", "V")
    def plan_units(self):
        self.units = []; self.uidx = {}
        for n in range(len(self.st)):
            for u in ((0,) if self.shared(n) else (0, 1)):
                self.uidx[(n, u)] = len(self.units); self.units.append((n, u))
        self.unext = 0; self.ufree = 4; self.upend = None; self.rdmode = "own"; self.landed = -1
    def srd_of(self, ty, seg):
        if seg in ("X", "WQ"): return SRD[("A" if ty == self.prog[0] else "B") + seg]
        return SRD[ty + seg]
    def soff(self, pos, off):
        E = self.E
        ty, seg, k = pos
        s = E.stmp()
        if seg == "WQ": E.e(f"s_add_u32 s{s}, s{S_ROT + (k >> 1)}, {off}")
        elif seg == "K": E.e(f"s_add_u32 s{s}, s{S_KC + ((k >> 1) & 3)}, {off}")
        elif seg == "WO": E.e(f"s_add_u32 s{s}, s{S_RO + (k >> 1)}, {off}")
        else: E.e(f"s_mov_b32 s{s}, {off}")
        return s
    def pump(self):
        E = self.E
        while self.unext < min(self.ufree, len(self.units)):
            ui = self.unext; n, unit = self.units[ui]
            pos = self.st[n]; ty, seg, k = pos
            slot = ui & 3
            offs = seg_offsets(seg, k)
            lo0 = (slot & 1) * 2048
            if offs[2 * unit] - lo0 < 0:
                E.e(f"s_add_u32 m0, s{S_RING0 + (slot >> 1)}, {lo0}"); lo0 = 0
            else:
                E.e(f"s_mov_b32 m0, s{S_RING0 + (slot >> 1)}")
            for i in range(2):
                lo = lo0 + i * 1024
                go = offs[2 * unit + i] - lo
                assert go >= 0
                s = self.soff(pos, go)
                off = f" offset:{lo}" if lo else ""
                fl = " nt" if n < self.opt.wqnt else SEG_NT[seg]
                if ty + seg in self.opt.nont.split(","): fl = ""
                E.vm(f"buffer_load_dwordx4 v{SEG_LP[seg]}, {sr(self.srd_of(ty, seg))}, s{s} offen{off}{fl} lds", ("D", ui))
            self.unext += 1
    def set_rdmode(self, mode):
        if mode == self.rdmode: return
        for r in [V_TR4 + i for i in range(4)] + [V_AK, V_AK + 1]:
            self.E.e(f"{'v_subrev_u32' if mode == 'pair' else 'v_add_u32'} v{r}, s{S_GOFF}, v{r}")
        self.rdmode = mode
    def a_reads(self, n, unit, base, tag):
        E = self.E
        af = AF + (n & 1) * 16
        if self.st[n][1] != "K":
            for u in range(4):
                d = af + u * 4 + 2 * unit
                E.ds(f"ds_read_b64_tr_b16 {vr(d,2)}, v{V_TR4+u} offset:{base}", (d, d + 1), tag)
        else:
            for e in range(2):
                d = af + (unit * 2 + e) * 4
                E.ds(f"ds_read_b128 {vr(d)}, v{V_AK+e} offset:{base}", range(d, d + 4), tag)
    def release_shared(self, pump=True):
        if self.upend is not None:
            self.ufree = self.upend + 5; self.upend = None
            if pump: self.pump()
    def sh_bar(self, n):
        E = self.E
        if n <= self.landed: return
        m = n
        if self.opt.sh2 and self.shared(n + 1) and self.uidx[(n + 1, 0)] < self.unext: m = n + 1
        E.vm_need(("D", self.uidx[(m, 0)]))
        if self.upend is not None: E.need_tag(("A", self.upend))
        E.e("s_barrier")
        self.release_shared(False)
        self.landed = m
    def sh_rd(self, n, u):
        ui = self.uidx[(n, 0)]
        self.set_rdmode("pair")
        self.a_reads(n, u, (ui & 3) * 2048 + u * 32768, ("A", ui))
        self.upend = ui
    def site_rd(self, n, unit):
        E = self.E
        if n >= len(self.st): return
        assert not self.shared(n)
        if self.upend is not None:
            E.need_tag(("A", self.upend)); E.e("s_barrier"); self.release_shared()
        ui = self.uidx[(n, unit)]
        E.vm_need(("D", ui))
        self.set_rdmode("own")
        self.a_reads(n, unit, (ui & 3) * 2048, ("A", ui))
    def site_rf(self, n, unit):
        if n >= len(self.st) or self.shared(n): return
        ui = self.uidx[(n, unit)]
        if self.unext < len(self.units): self.E.need_tag(("A", ui))
        self.ufree = ui + 5
        self.pump()

    def std_sites(self, n, base=0):
        opt = self.opt
        if self.shared(n):
            return [(base + opt.sh0, "sb", n, 0), (base + opt.sh0 + opt.d0, "sr", n, 0), (base + opt.sh0 + opt.d1, "sr", n, 1), (base + opt.sh0 + opt.d2, "sp", n, 0)]
        return [(base + opt.s0, "rd", n, 0), (base + opt.s1, "rf", n, 0), (base + opt.s2, "rd", n, 1), (base + opt.s3, "rf", n, 1)]
    def fast_sites(self, n, base):
        if self.shared(n):
            return [(base, "sb", n, 0), (base, "sr", n, 0), (base + 1, "sr", n, 1), (base + 2, "sp", n, 0)]
        return [(base, "rd", n, 0), (base + 1, "rd", n, 1), (base + 6, "rf", n, 0), (base + 8, "rf", n, 1)]
    def do_site(self, what, n, unit):
        if what == "rd": self.site_rd(n, unit)
        elif what == "rf": self.site_rf(n, unit)
        elif what == "sb": self.sh_bar(n)
        elif what == "sr": self.sh_rd(n, unit)
        else: self.pump()
    def gemm(self, n0, steps, baddr, hooks=None, fence=None, pre=None, ns=10, merge=False, ns_late=None):
        E = self.E; opt = self.opt
        hooks = hooks if hooks is not None else {}
        flat = []; sites = {}
        nst = len(steps)
        for hs, ms in enumerate(steps):
            if merge and hs >= nst - 2: break
            for (i, w, n, u) in self.std_sites(n0 + hs + 1, len(flat)): sites.setdefault(i, []).append((w, n, u))
            flat += [m + (n0 + hs,) for m in ms]
        post = []
        if merge:
            base = len(flat)
            A_, B_ = steps[-2], steps[-1]
            na, nb_ = n0 + nst - 2, n0 + nst - 1
            def tile(st, n, t): return [m + (n,) for m in st[4 * t: 4 * t + 4]]
            order = [(A_, na, 0), (A_, na, 1), (A_, na, 2), (B_, nb_, 0), (B_, nb_, 1), (B_, nb_, 2), (A_, na, 3), (B_, nb_, 3), (A_, na, 4), (B_, nb_, 4)]
            self.tile_done = {}
            for (st, n, t) in order:
                flat += tile(st, n, t)
                if n == nb_: self.tile_done[t] = len(flat) - 1
            for (i, w, n, u) in self.fast_sites(nb_, base): sites.setdefault(i, []).append((w, n, u))
            for (i, w, n, u) in self.fast_sites(nb_ + 1, base + 35):
                if i < len(flat): sites.setdefault(i, []).append((w, n, u))
                else: post.append((w, n, u))
            if callable(merge): merge()
        loads = []; last = {}
        for i, m in enumerate(flat):
            if m[2] not in last: loads.append(m[2])
            last[m[2]] = i
        slot = {}; free = list(range(ns)); busy = []
        nxt = [0]; extra = [ns_late]
        def can(gi):
            k = nxt[0]
            if k >= len(loads): return False
            if fence and k >= fence[0] and fence[1] not in self.flags: return False
            if extra[0] and gi >= extra[0][0]:
                free.extend(range(ns, extra[0][1])); extra[0] = None
            for x in list(busy):
                if x[0] <= gi: busy.remove(x); free.append(x[1])
            return bool(free)
        def issue_b():
            k = loads[nxt[0]]; sl = free.pop(0); slot[k] = sl; busy.append((last[k], sl))
            d = BF + sl * 4
            v, off = baddr(k)
            E.ds(f"ds_read_b128 {vr(d)}, v{v} offset:{off}", range(d, d + 4), "B")
            nxt[0] += 1
        self.b_left = lambda: len(loads) - nxt[0]
        self.b_issued = lambda: nxt[0]
        while can(-1): issue_b()
        if pre: pre()
        for gi, (acc, aidx, bkey, cin, n) in enumerate(flat):
            a = AF + (n & 1) * 16 + aidx * 4
            assert bkey in slot, "B frag not loaded (fence too late)"
            b = BF + slot[bkey] * 4
            E.need(list(range(a, a + 4)) + list(range(b, b + 4)))
            c = vr(acc) if cin is None else cin
            E.e(f"v_mfma_f32_16x16x32_bf16 {vr(acc)}, {vr(a)}, {vr(b)}, {c}")
            for h in hooks.get(gi, ()): h()
            nb = 0
            while nb < 3 and can(gi): issue_b(); nb += 1
            for st in sites.get(gi, ()): self.do_site(*st)
        self.post = post
        E.e("s_nop 7")

    def ba_g(self, frag):
        return (V_BA, frag * 1024) if frag < 40 else (V_BB, (frag - 40) * 1024)

    XR = ACC2
    untracked = False
    def x_load(self, ty, only=None, fl="", t0=V_T0):
        E = self.E
        E.e(f"v_lshrrev_b32 v{t0}, 3, v{V_LANE}")
        E.e(f"v_bfe_u32 v{t0+1}, v{V_LANE}, 2, 1")
        E.e(f"v_xor_b32 v{t0}, v{t0}, v{t0+1}")
        E.e(f"v_mul_u32_u24 v{t0}, 896, v{t0}")
        E.e(f"v_and_b32 v{t0+1}, 7, v{V_LANE}")
        E.e(f"v_lshl_add_u32 v{t0}, v{t0+1}, 4, v{t0}")
        for t in range(5):
            if only is not None and t != only: continue
            for h in range(2):
                s = E.stmp()
                E.e(f"s_mov_b32 s{s}, {(16*t+8*h)*896}")
                d = self.XR + (t * 2 + h) * 4
                ins = f"buffer_load_dwordx4 {vr(d)}, v{t0}, {sr(self.srd_of(ty, 'X'))}, s{s} offen{fl}"
                if self.untracked: E.e(ins)
                else: E.vm(ins, "X")
    def x_addr(self, t0):
        E = self.E
        E.e(f"v_lshrrev_b32 v{t0}, 3, v{V_LANE}")
        E.e(f"v_bfe_u32 v{t0+1}, v{V_LANE}, 2, 1")
        E.e(f"v_xor_b32 v{t0}, v{t0}, v{t0+1}")
        E.e(f"v_and_b32 v{t0+2}, 3, v{V_LANE}")
        E.e(f"v_lshl_add_u32 v{t0}, v{t0+2}, 4, v{t0}")
        E.e(f"v_lshlrev_b32 v{t0+2}, 1, v{t0+2}")
        E.e(f"v_xor_b32 v{t0}, v{t0}, v{t0+2}")
        E.e(f"v_lshlrev_b32 v{t0}, 4, v{t0}")
        E.e(f"v_mul_u32_u24 v{t0+1}, 5120, v{t0+1}")
        E.e(f"v_add3_u32 v{t0}, v{t0}, v{t0+1}, s{S_WB}")
    def xw_ins(self, t0, f): return f"ds_write_b128 v{t0}, {vr(self.XR+f*4)} offset:{(f>>1)*1024 + (f&1)*128}"
    def x_write1(self, t0, f):
        self.E.vm_need("X")
        self.E.ds(self.xw_ins(t0, f))

    def q_addr(self):
        E = self.E; t0 = V_T0; m = V_M
        for up in range(2):
            E.e(f"v_lshrrev_b32 v{m}, 5, v{V_LANE}")
            E.e(f"v_add_u32 v{m}, {2*up}, v{m}")
            E.e(f"v_lshlrev_b32 v{m+1}, 1, v{m}")
            E.e(f"v_and_b32 v{m+2}, 15, v{V_LANE}")
            E.e(f"v_xor_b32 v{m+1}, v{m+2}, v{m+1}")
            E.e(f"v_lshl_add_u32 v{m+1}, v{m}, 4, v{m+1}")
            E.e(f"v_lshlrev_b32 v{m+1}, 4, v{m+1}")
            E.e(f"v_bfe_u32 v{m+2}, v{V_LANE}, 4, 1")
            E.e(f"v_lshl_add_u32 v{m+1}, v{m+2}, 3, v{m+1}")
            E.e(f"v_add_u32 v{t0+up}, s{S_WB_Q}, v{m+1}")
    def q_write_t(self, t):
        E = self.E; t0 = V_T0
        for p in range(2):
            for e in range(2):
                a = acc_reg(ACC, p, e, t)
                E.e(f"v_cvt_pk_bf16_f32 v{a}, v{a}, v{a+1}")
                E.e(f"v_cvt_pk_bf16_f32 v{a+1}, v{a+2}, v{a+3}")
                E.ds(f"ds_write_b64 v{t0+e}, {vr(a,2)} offset:{(p*5+t)*1024}")

    def stat_write(self, op, regs, region, tmp, va):
        E = self.E
        E.e(f"v_lshlrev_b32 v{va}, 4, v{V_LANE}")
        E.e(f"s_lshl_b32 s{S_T2}, s{S_I}, 11"); E.e(f"s_lshl_b32 s{S_T3}, s{S_J}, 2"); E.e(f"s_add_u32 s{S_T2}, s{S_T2}, s{S_T3}")
        E.e(f"s_add_u32 s{S_T2}, s{S_T2}, {LDS_CELL + region*4096}")
        E.e(f"v_add_u32 v{va}, s{S_T2}, v{va}")
        q = regs
        E.e(f"v_mov_b32 v{tmp}, v{q[4]}")
        E.e("s_nop 1")
        prs = [(q[0], q[2]), (q[1], q[3]), (q[4], tmp)]
        for (x, y) in prs: E.e(f"v_permlane32_swap_b32 v{x}, v{y}")
        for (x, y) in prs: E.e(f"{op} v{x}, v{x}, v{y}")
        E.e(f"v_mov_b32 v{tmp}, v{q[4]}")
        E.e("s_nop 1")
        l2 = [(q[0], q[1]), (q[4], tmp)]
        for (x, y) in l2: E.e(f"v_permlane16_swap_b32 v{x}, v{y}")
        for (x, y) in l2: E.e(f"{op} v{x}, v{x}, v{y}")
        for k, (x, y) in enumerate(l2):
            E.ds(f"ds_write_b32 v{va}, v{x} offset:{k*1024}")
    def stat_read(self, op3, op, regs, region, tmps, va):
        E = self.E
        E.e(f"v_and_b32 v{va}, 15, v{V_LANE}")
        E.e(f"v_lshlrev_b32 v{va}, 4, v{va}")
        E.e(f"s_lshl_b32 s{S_T2}, s{S_I}, 11"); E.e(f"s_add_u32 s{S_T2}, s{S_T2}, {LDS_CELL + region*4096}")
        E.e(f"v_add_u32 v{va}, s{S_T2}, v{va}")
        for g in range(5):
            E.ds(f"ds_read_b128 {vr(tmps[g])}, v{va} offset:{g*256}", range(tmps[g], tmps[g] + 4))
        for g in range(5):
            v = tmps[g]
            E.need(range(v, v + 4))
            if op3:
                E.e(f"{op} v{regs[g]}, v{v}, v{v+1}")
                E.e(f"{op3} v{regs[g]}, v{regs[g]}, v{v+2}, v{v+3}")
            else:
                E.e(f"v_pk_add_f32 {vr(v,2)}, {vr(v,2)}, {vr(v+2,2)}")
                E.e(f"{op} v{regs[g]}, v{v}, v{v+1}")
    def wr_addr(self, dst): self.E.e(f"v_add_u32 v{dst}, s{S_WB}, v{V_BA}")
    def pack(self, base, p, t):
        E = self.E
        a = acc_reg(base, p, 0, t); b = acc_reg(base, p, 1, t)
        E.e(f"v_cvt_pk_bf16_f32 v{a}, v{a}, v{a+1}")
        E.e(f"v_cvt_pk_bf16_f32 v{a+1}, v{a+2}, v{a+3}")
        E.e(f"v_cvt_pk_bf16_f32 v{a+2}, v{b}, v{b+1}")
        E.e(f"v_cvt_pk_bf16_f32 v{a+3}, v{b+2}, v{b+3}")
        return a

    def max_ins(self, base, init):
        mem = [[acc_reg(base, p, e, t) + r for p in range(2) for e in range(2) for r in range(4)] for t in range(5)]
        out = []
        for k in range(0, 16, 2):
            for t in range(5):
                if k == 0 and init: out.append(f"v_max_f32 v{V_M+t}, v{mem[t][0]}, v{mem[t][1]}")
                else: out.append(f"v_max3_f32 v{V_M+t}, v{V_M+t}, v{mem[t][k]}, v{mem[t][k+1]}")
        return out
    def exp_frag(self, base, p, t, ts, s, first):
        regs = [acc_reg(base, p, e, t) + r for e in range(2) for r in range(4)]
        o = [f"v_fma_f32 v{r}, v{r}, s{S_C}, -v{V_M+t}" for r in regs]
        o += [f"v_exp_f32 v{r}, v{r}" for r in regs]
        o.append(f"v_pk_add_f32 {vr(ts,2)}, {vr(regs[0],2)}, {vr(regs[2],2)}")
        o.append(f"v_pk_add_f32 {vr(ts+2,2)}, {vr(regs[4],2)}, {vr(regs[6],2)}")
        a, b = regs[0], regs[4]
        o += [f"v_cvt_pk_bf16_f32 v{a}, v{a}, v{a+1}", f"v_cvt_pk_bf16_f32 v{a+1}, v{a+2}, v{a+3}",
              f"v_cvt_pk_bf16_f32 v{a+2}, v{b}, v{b+1}", f"v_cvt_pk_bf16_f32 v{a+3}, v{b+2}, v{b+3}"]
        o.append(f"v_pk_add_f32 {vr(ts,2)}, {vr(ts,2)}, {vr(ts+2,2)}")
        if first: o.append(f"v_add_f32 v{s}, v{ts}, v{ts+1}")
        else:
            o.append(f"v_add_f32 v{s}, v{s}, v{ts}")
            o.append(f"v_add_f32 v{s}, v{s}, v{ts+1}")
        return o
    def softmax(self, ty):
        E = self.E; opt = self.opt
        M = [V_M + t for t in range(5)]
        for i in self.max_ins(ACC2, False): E.e(i)
        self.stat_write("v_max_f32", M, 0, AF + 16, AF + 17)
        self.barrier()
        self.stat_read("v_max3_f32", "v_max_f32", M, 0, [BF + 4 * k for k in range(5)], AF + 17)
        for t in range(5): E.e(f"v_mul_f32 v{M[t]}, s{S_C}, v{M[t]}")
        S = [BF + 32 + t for t in range(5)]
        vw = BF + 37
        self.wr_addr(vw)
        for i, (p, t) in enumerate(FR):
            for ins in self.exp_frag(ACC, p, t, AF + 20 + 4 * (i & 1), S[t], p == 0): E.e(ins)
            E.ds(f"ds_write_b128 v{vw}, {vr(acc_reg(ACC,p,0,t))} offset:{(p*5+t)*1024}")
        nex = opt.nex if ty == 'A' else opt.nexb
        for i, (p, t) in enumerate(FR[:nex]):
            for ins in self.exp_frag(ACC2, p, t, AF + 20 + 4 * (i & 1), S[t], False): E.e(ins)
        self.barrier()
        hid = []
        for i, (p, t) in enumerate(FR[nex:]):
            ts = 252 if (i == 0 and nex == 0) else acc_reg(ACC2, FR[0][0], 1, FR[0][1])
            if i == 0 and nex == 0:
                pass
            hid += self.exp_frag(ACC2, p, t, ts, S[t], False)
        def fin(): self.stat_write("v_add_f32", S, 1, BF + 38, BF + 39)
        return hid, fin, vw

    def o_write(self):
        E = self.E
        VS = V_M
        vw = V_T0 + 1
        E.e(f"v_add_u32 v{vw}, s{S_WB_O}, v{V_BA}")
        for t in range(5):
            for p in range(2):
                regs = [acc_reg(ACC, p, e, t) + r for e in range(2) for r in range(4)]
                for r in regs: E.e(f"v_mul_f32 v{r}, v{r}, v{VS+t}")
                d = self.pack(ACC, p, t)
                E.ds(f"ds_write_b128 v{vw}, {vr(d)} offset:{(p*5+t)*1024}")
    def rinv(self):
        E = self.E
        M = [V_M + t for t in range(5)]
        self.stat_read(None, "v_add_f32", M, 1, [ACC2 + 60 + 4 * k for k in range(5)], V_T0 + 2)
        for t in range(5): E.e(f"v_rcp_f32 v{M[t]}, v{M[t]}")

    def part_store(self, ty, fl="sc1"):
        E = self.E
        va = V_T0 + 3
        E.e(f"v_lshlrev_b32 v{va}, 4, v{V_LANE}")
        for (p, t) in FR:
            d = self.pack(ACC, p, t)
            s = E.stmp()
            E.e(f"s_mov_b32 s{s}, {(p*5+t)*1024}")
            E.vm(f"buffer_store_dwordx4 {vr(d)}, v{va}, {sr(SRD[ty+'P'])}, s{s} offen {fl}", "ST")
        E.e("s_nop 1")

    def part_store_t(self, ty, t):
        E = self.E
        va = V_T0 + 3
        if t == 0: E.e(f"v_lshlrev_b32 v{va}, 4, v{V_LANE}")
        for p in range(2):
            d = self.pack(ACC, p, t)
            s = E.stmp()
            E.e(f"s_mov_b32 s{s}, {(p*5+t)*1024}")
            E.vm(f"buffer_store_dwordx4 {vr(d)}, v{va}, {sr(SRD[ty+'P'])}, s{s} offen sc1", "ST")
    def part_pack(self):
        E = self.E
        for i, (p, t) in enumerate(FR):
            a = acc_reg(ACC, p, 0, t); b = acc_reg(ACC, p, 1, t); d = ACC2 + 40 + 4 * i
            E.e(f"v_cvt_pk_bf16_f32 v{d}, v{a}, v{a+1}")
            E.e(f"v_cvt_pk_bf16_f32 v{d+1}, v{a+2}, v{a+3}")
            E.e(f"v_cvt_pk_bf16_f32 v{d+2}, v{b}, v{b+1}")
            E.e(f"v_cvt_pk_bf16_f32 v{d+3}, v{b+2}, v{b+3}")
    def part_store1(self, ty, i):
        E = self.E
        va = V_T0 + 3
        if i == 0: E.e(f"v_lshlrev_b32 v{va}, 4, v{V_LANE}")
        s = E.stmp()
        E.e(f"s_mov_b32 s{s}, {i*1024}")
        E.vm(f"buffer_store_dwordx4 {vr(ACC2+40+4*i)}, v{va}, {sr(SRD[ty+'P'])}, s{s} offen sc1", "ST")

    def cnt_addr(self, ty, ws):
        E = self.E
        if ws:
            E.e(f"s_mul_i32 s{S_T2}, s{S_B}, {self.opt.wss}"); E.e(f"s_add_u32 s{S_T2}, s{S_T2}, {WSC}")
            return f"s[{P_WS}:{P_WS+1}]", 0
        E.e(f"s_lshl_b32 s{S_T2}, s{S_B}, 2")
        return f"s[{P_DBG}:{P_DBG+1}]", (0 if ty == "A" else 128)
    def signal(self, ty, lab, ws=False):
        E = self.E
        E.e(f"s_cmp_lg_u32 s{S_W}, 0"); E.e(f"s_cbranch_scc1 {lab}")
        base, imm = self.cnt_addr(ty, ws)
        E.e(f"v_mov_b32 v{V_T0+2}, s{S_T2}"); E.e(f"v_mov_b32 v{V_T0+3}, 1")
        E.e("s_mov_b64 exec, 1")
        E.e(f"global_atomic_add v{V_T0+2}, v{V_T0+3}, {base} offset:{imm} sc1")
        E.e("s_mov_b64 exec, -1")
        E.lab(lab)
    def cnt_reset(self, lab):
        E = self.E
        E.e(f"s_or_b32 s{S_T2}, s{S_W}, s{S_JX}"); E.e(f"s_cmp_lg_u32 s{S_T2}, 0"); E.e(f"s_cbranch_scc1 {lab}")
        base, imm = self.cnt_addr("A", True)
        E.e(f"v_mov_b32 v{V_T0+2}, s{S_T2}"); E.e(f"v_mov_b32 v{V_T0+3}, 0")
        E.e("s_mov_b64 exec, 1")
        E.e(f"global_store_dword v{V_T0+2}, v{V_T0+3}, {base} sc1")
        E.e("s_mov_b64 exec, -1")
        E.lab(lab)

    def early_barrier(self):
        self.E.need_tag("B"); self.E.e("s_barrier")

    def round(self, ty, n0, first, other):
        E = self.E; opt = self.opt
        last = not first
        H = [{}]
        def add(idx, f): H[0].setdefault(idx, []).append(f)
        def spread(ins, i0, i1):
            n = len(ins)
            for k, x in enumerate(ins): add(i0 + (k * (i1 - i0)) // n, (lambda x=x: E.e(x)))
        def tr4(nk, keyf, cin0="0"):
            return [[(acc_reg(ACC, u >> 1, u & 1, t), u, keyf(k, t), cin0 if k == 0 else None) for t in range(5) for u in range(4)] for k in range(nk)]
        add(280 - 60, self.q_addr)
        add(280 - opt.eb, self.early_barrier)
        if last and not opt.dst: add(100, lambda: E.vm_need("ST"))
        if last and opt.dst == 2:
            for i in range(10): add(opt.dst0 + i * opt.dsts, (lambda i=i: self.part_store1(other, i)))
        for t in range(opt.qin): add(260 + 4 * t + 3 + 9, (lambda t=t: self.q_write_t(t)))
        pre = ((lambda: self.part_store(other, "" if opt.wb else "sc1")) if not opt.dst else self.part_pack) if last else None
        fence = None
        if first and opt.wpf > 1: add(opt.wpf, self.wo_touch)
        if first and opt.fstart:
            def pre():
                self.site_rf(0, 1)
                self.untracked = True
                E.e(f"s_cmp_lt_u32 s{S_W}, 4"); E.e(f"s_cbranch_scc1 L_xb")
                self.x_load(ty, t0=V_M)
                E.lab(f"L_xb")
                self.untracked = False
                E.vq.append("@X")
            def xw2():
                E.vm_need("@X")
                E.e(f"s_cmp_lt_u32 s{S_W}, 4"); E.e(f"s_cbranch_scc1 L_xt")
                for f in range(10): E.e(self.xw_ins(V_T0, f))
                E.lab(f"L_xt")
            def xb2():
                E.drain(); E.e("s_barrier"); self.flags.add("x2")
            add(opt.xw2, xw2); add(opt.xb2, xb2)
            fence = (40, "x2")
        self.gemm(n0, tr4(14, lambda k, t: k * 5 + t), self.ba_g, H[0], pre=pre, fence=fence)
        self.stamp()
        for t in range(opt.qin, 5): self.q_write_t(t)
        self.barrier()
        if last and not opt.dst: self.signal(other, f"L_sig{self.prog}a")
        if first and opt.wsc: self.cnt_reset(f"L_rst{self.prog}")
        nK = n0 + 14
        steps = []
        for k in range(16):
            hf, c, p = k >> 3, (k >> 1) & 3, k & 1
            acc = ACC if hf == 0 else ACC2
            steps.append([(acc_reg(acc, p, u, t), u * 2 + e, (hf, (2 * c + e) * 5 + t), "0" if (c == 0 and e == 0) else None)
                          for e in range(2) for t in range(5) for u in range(2)])
        ba = lambda k: (V_BH, k[1] * 1024)
        H[0] = {}
        spread(self.max_ins(ACC, True), 175, 255)
        if last and opt.dst == 1:
            for i in range(10): add(opt.dst0 + i * opt.dsts, (lambda i=i: self.part_store1(other, i)))
        if last and opt.dst: add(300, lambda: E.vm_need("ST"))
        self.gemm(nK, steps, ba, H[0])
        self.stamp()
        if last and not opt.dst: self.flag_load(other, AF + 28, 255)
        hid, fin, vw = self.softmax(ty)
        if last and opt.dst: self.signal(other, f"L_sig{self.prog}a")
        nV = nK + 16
        H[0] = {}
        self.flags.discard("p2")
        look = 32
        e0 = 160 - look + look // 4
        spread(hid, 2, e0 - 14)
        add(e0 - 12, fin)
        add(e0, self.early_barrier)
        span = look - look // 4 - 2
        for i, (p, t) in enumerate(FR):
            add(e0 + (i * (span // 2)) // 10, (lambda p=p, t=t: E.ds(f"ds_write_b128 v{vw}, {vr(acc_reg(ACC2,p,0,t))} offset:{(p*5+t)*1024}", (), "W")))
        def bar2():
            E.need_tag("W"); E.e("s_barrier"); self.flags.add("p2")
        add(e0 + span, bar2)
        add(220, self.rinv)
        add(320 - look + look // 4, self.early_barrier)
        xpv = first and ty in opt.xpv
        if xpv:
            for t in range(5): add(opt.xp0 + t * opt.xps, (lambda t=t: self.x_load(other, t)))
        if last: add(200, self.reduce_setup)
        if last: add(250, lambda: self.flag_check(other, f"L_f{self.prog}"))
        if last and opt.dst: add(300, lambda: self.flag_load(other, V_T0, 255))
        self.gemm(nV, tr4(16, lambda k, t: (k >> 3, (k & 7) * 5 + t)), ba, H[0], fence=(40, "p2"), ns=8)
        self.stamp()
        self.o_write()
        self.barrier()
        nO = nV + 16
        H[0] = {}
        if first:
            for t in range(0 if xpv else 5): add(opt.xop + t * opt.xops, (lambda t=t: self.x_load(other, t, " nt" if opt.x2nt else "")))
            add(320 - 60, lambda: self.x_addr(V_T0))
            add(320 - 30, self.early_barrier)
            for f in range(10): add(320 - 30 + f, (lambda f=f: self.x_write1(V_T0, f)))
        done = []
        def cb():
            for t in range(5):
                idx = self.tile_done[t] + opt.td
                if idx < 320:
                    if opt.td < 8: add(idx, lambda: E.e(f"s_nop {7 - opt.td}"))
                    add(idx, (lambda t=t: self.part_store_t(ty, t))); done.append(t)
        self.gemm(nO, tr4(16, lambda k, t: k * 5 + t), self.ba_g, H[0], merge=cb if (last and opt.mo) else False)
        if first: self.barrier()
        else:
            self.stamp()
            for t in range(5):
                if t not in done: self.part_store_t(ty, t)
        return nO + 16

    RO = 112
    def poll(self, ty, lab, allw, ws=False):
        E = self.E
        if not allw:
            E.e(f"s_cmp_lg_u32 s{S_W}, 0"); E.e(f"s_cbranch_scc1 {lab}go")
        base, imm = self.cnt_addr(ty, ws)
        E.e(f"v_mov_b32 v116, s{S_T2}")
        E.lab(f"{lab}poll")
        E.e("s_mov_b64 exec, 1")
        E.e(f"global_load_dword v117, v116, {base} offset:{imm} sc1")
        E.e("s_mov_b64 exec, -1")
        E.e("s_waitcnt vmcnt(0)")
        E.e(f"v_readfirstlane_b32 s{S_T2}, v117")
        E.e("s_nop 3")
        E.e(f"s_cmp_ge_u32 s{S_T2}, 8")
        E.e(f"s_cbranch_scc1 {lab}go")
        E.e(f"s_sleep {self.opt.slp}")
        E.e(f"s_branch {lab}poll")
        E.lab(f"{lab}go")
        if not allw: E.e("s_barrier")
    def flag_load(self, ty, va, vd):
        E = self.E
        self.fd = vd
        lab = f"L_fl{self.prog}"
        E.e(f"s_cmp_lg_u32 s{S_W}, 0"); E.e(f"s_cbranch_scc1 {lab}")
        base, imm = self.cnt_addr(ty, False)
        E.e(f"v_mov_b32 v{va}, s{S_T2}")
        E.e("s_mov_b64 exec, 1")
        E.e(f"global_load_dword v{vd}, v{va}, {base} offset:{imm} sc1")
        E.e("s_mov_b64 exec, -1")
        E.lab(lab)
        E.vq.append("@F")
    def flag_check(self, ty, lab):
        E = self.E
        E.vm_need("@F")
        E.e(f"s_cmp_lg_u32 s{S_W}, 0"); E.e(f"s_cbranch_scc1 {lab}go")
        E.e(f"v_readfirstlane_b32 s{S_T2}, v{self.fd}")
        E.e("s_nop 3")
        E.e(f"s_cmp_ge_u32 s{S_T2}, 8")
        E.e(f"s_cbranch_scc1 {lab}go")
        self.poll(ty, lab, True)
    def red_loads(self, ty, lab):
        E = self.E
        br = 0 if ty == "A" else 1
        E.e(f"s_add_u32 s{S_T2}, s{S_B}, {br*32}"); E.e(f"s_mul_i32 s{S_T2}, s{S_T2}, {8*PART}")
        E.e(f"s_add_u32 s16, s{P_WS}, s{S_T2}"); E.e(f"s_addc_u32 s17, s{P_WS+1}, 0"); E.e(f"s_mov_b32 s18, {8*PART}"); E.e("s_mov_b32 s19, 0x20000")
        for ps in (1, 0):
            base = 120 if ps == 0 else 80
            if ps == 1:
                E.e(f"s_cmp_lg_u32 s{S_W}, 7"); E.e(f"s_cbranch_scc1 {lab}p1")
            E.e(f"s_mov_b32 s{S_T2}, 0")
            for j in range(8):
                t = f"buffer_load_dwordx4 {vr(base+4*j)}, v{self.RO+ps}, s[16:19], s{S_T2} offen sc1"
                if ps == 1: E.e(t)
                else: E.vm(t, ("RL", j))
                if j < 7: E.e(f"s_add_u32 s{S_T2}, s{S_T2}, {PART}")
            if ps == 1: E.lab(f"{lab}p1")
    def red_sum(self, ty, lab):
        E = self.E
        br = 0 if ty == "A" else 1
        A = BF
        for ps in (1, 0):
            base = 120 if ps == 0 else 80
            if ps == 1:
                E.vm_need(("RL", 0))
                E.e(f"s_cmp_lg_u32 s{S_W}, 7"); E.e(f"s_cbranch_scc1 {lab}p2")
            for j in range(8):
                if ps == 0: E.vm_need(("RL", j))
                for k in range(4):
                    r = base + 4 * j + k
                    o = 0 if j == 0 else 8
                    E.e(f"v_lshlrev_b32 v{A+o+2*k}, 16, v{r}"); E.e(f"v_and_b32 v{A+o+1+2*k}, 0xffff0000, v{r}")
                if j:
                    for k in range(4): E.e(f"v_pk_add_f32 {vr(A+2*k,2)}, {vr(A+2*k,2)}, {vr(A+8+2*k,2)}")
            d = A + 16 + 4 * ps
            for k in range(4): E.e(f"v_cvt_pk_bf16_f32 v{d+k}, v{A+2*k}, v{A+1+2*k}")
            for h in range(2):
                t = f"buffer_store_dwordx2 {vr(d+2*h,2)}, v{self.RO+2+ps}, s[20:23], 0 offen offset:{br*896+32*h}"
                if ps == 1: E.e(t)
                else: E.vm(t, "OS")
            if ps == 1: E.lab(f"{lab}p2")
    def reduce_setup(self):
        E = self.E; R = self.RO
        E.e(f"s_mul_i32 s{S_T2}, s{S_B}, {80*1792}")
        E.e(f"s_add_u32 s20, s{P_OUT}, s{S_T2}"); E.e(f"s_addc_u32 s21, s{P_OUT+1}, 0"); E.e(f"s_mov_b32 s22, {80*1792}"); E.e("s_mov_b32 s23, 0x20000")
        E.e(f"s_mul_i32 s{S_T2}, s{S_JX}, 560")
        E.e(f"s_lshl_b32 s{S_T3}, s{S_W}, 6"); E.e(f"s_add_u32 s{S_T3}, s{S_T3}, s{S_T2}")
        E.e(f"s_add_u32 s{S_T2}, s{S_T2}, 512")
        E.e(f"v_add_u32 v104, s{S_T3}, v{V_LANE}")
        E.e(f"v_add_u32 v105, s{S_T2}, v{V_LANE}")
        for ps in range(2):
            it = 104 + ps
            E.e(f"v_lshlrev_b32 v{R+ps}, 4, v{it}")
            E.e(f"v_lshrrev_b32 v106, 6, v{it}")
            E.e(f"v_mul_u32_u24 v107, 205, v106"); E.e("v_lshrrev_b32 v107, 10, v107")
            E.e(f"v_mul_u32_u24 v108, 5, v107"); E.e("v_sub_u32 v108, v106, v108")
            E.e(f"v_and_b32 v109, 15, v{it}")
            E.e("v_lshl_add_u32 v108, v108, 4, v109")
            E.e("v_mul_u32_u24 v108, 1792, v108")
            E.e("v_lshl_add_u32 v108, v107, 6, v108")
            E.e(f"v_bfe_u32 v109, v{it}, 4, 2")
            E.e(f"v_lshl_add_u32 v{R+2+ps}, v109, 3, v108")
        E.e(f"v_cmp_gt_u32 vcc, 48, v{V_LANE}")
        E.e("v_mov_b32 v106, 0x7ff00000")
        E.e("s_nop 1")
        E.e(f"v_cndmask_b32 v{R+1}, v106, v{R+1}, vcc")
        E.e(f"v_cndmask_b32 v{R+3}, v106, v{R+3}, vcc")

    def srd(self, name, ptr, off_s, total, zero_w7=False):
        E = self.E; d = SRD[name]
        E.e(f"s_add_u32 s{d}, s{S_PTR+2*ptr}, s{off_s}")
        E.e(f"s_addc_u32 s{d+1}, s{S_PTR+2*ptr+1}, 0")
        E.e(f"s_sub_u32 s{d+2}, {total}, s{off_s}")
        E.e(f"s_mov_b32 s{d+3}, 0x20000")
        if zero_w7:
            E.e(f"s_cmp_eq_u32 s{S_W}, 7")
            E.e(f"s_cselect_b32 s{d+2}, 0, s{d+2}")

    def setup(self):
        E = self.E
        E.e("s_cmp_ge_u32 s2, 256"); E.e("s_cbranch_scc1 L_exit")
        E.e(f"s_load_dwordx16 s[{S_PTR}:{S_PTR+15}], s[0:1], 0")
        E.e(f"s_load_dwordx8 s[{S_PTR+16}:{S_PTR+23}], s[0:1], 64")
        E.e(f"s_load_dwordx2 s[{S_PTR+24}:{S_PTR+25}], s[0:1], 96")
        E.e(f"v_lshrrev_b32 v1, 6, v0")
        E.e(f"v_and_b32 v{V_LANE}, 63, v0")
        E.e(f"v_readfirstlane_b32 s{S_W}, v1")
        L = V_LANE
        E.e(f"v_and_b32 v1, 7, v{L}")
        E.e(f"v_lshrrev_b32 v2, 4, v{L}")
        E.e(f"v_lshlrev_b32 v3, 1, v2")
        E.e(f"v_xor_b32 v1, v1, v3")
        E.e(f"v_lshlrev_b32 v1, 4, v1")
        E.e(f"v_lshrrev_b32 v4, 3, v{L}")
        E.e(f"v_lshl_add_u32 v{V_LPKV}, v4, 9, v1")
        E.e(f"v_mul_u32_u24 v5, 896, v4")
        E.e(f"v_add_u32 v{V_LPWO}, v5, v1")
        E.e(f"v_and_b32 v5, 3, v4")
        E.e(f"v_lshrrev_b32 v6, 2, v4")
        E.e(f"v_lshl_add_u32 v5, v6, 3, v5")
        E.e(f"v_lshl_add_u32 v{V_LPWQ}, v5, 13, v1")
        E.e(f"s_lshl_b32 s{S_RING0}, s{S_W}, 13")
        E.e(f"s_add_u32 s{S_RING0}, s{S_RING0}, {LDS_RING}")
        E.e(f"s_add_u32 s{S_RING1}, s{S_RING0}, 4096")
        E.e(f"s_lshr_b32 s{S_I}, s{S_W}, 2")
        E.e(f"s_and_b32 s{S_J}, s{S_W}, 3")
        E.e(f"s_lshl_b32 s{S_GOFF}, s{S_I}, 15")
        E.e(f"v_bfe_u32 v5, v{L}, 2, 3")
        E.e(f"v_lshrrev_b32 v6, 1, v5")
        E.e(f"v_lshlrev_b32 v6, 1, v6")
        E.e(f"v_bfe_u32 v7, v{L}, 1, 1")
        E.e(f"v_xor_b32 v6, v6, v7")
        E.e(f"v_lshlrev_b32 v6, 4, v6")
        E.e(f"v_lshl_add_u32 v6, v5, 7, v6")
        E.e(f"v_and_b32 v8, 1, v{L}")
        E.e(f"v_lshl_add_u32 v6, v8, 3, v6")
        E.e(f"v_lshrrev_b32 v9, 5, v{L}")
        E.e(f"v_lshl_add_u32 v6, v9, 10, v6")
        E.e(f"v_add_u32 v{V_TR4}, s{S_RING0}, v6")
        for t in range(1, 4): E.e(f"v_xor_b32 v{V_TR4+t}, {t<<5}, v{V_TR4}")
        E.e(f"v_and_b32 v5, 15, v{L}")
        E.e(f"v_and_b32 v6, 6, v{L}")
        E.e(f"v_xor_b32 v6, v6, v2")
        E.e(f"v_lshlrev_b32 v6, 4, v6")
        E.e(f"v_lshl_add_u32 v6, v5, 7, v6")
        E.e(f"v_add_u32 v{V_AK}, s{S_RING0}, v6")
        E.e(f"v_xor_b32 v{V_AK+1}, 64, v{V_AK}")
        E.e(f"v_xor_b32 v6, v5, v3")
        E.e(f"v_lshl_add_u32 v6, v2, 4, v6")
        E.e(f"v_lshlrev_b32 v{V_BA}, 4, v6")
        E.e(f"v_add_u32 v{V_BB}, 40960, v{V_BA}")
        E.e(f"s_mul_i32 s{S_T0}, s{S_I}, 40960")
        E.e(f"v_add_u32 v{V_BH}, s{S_T0}, v{V_BA}")
        E.e(f"s_mul_i32 s{S_WB}, s{S_W}, 10240")
        E.e(f"s_mov_b32 s{S_C}, 0x3db8aa3b")
        J, B = S_JX, S_B
        E.e(f"s_and_b32 s{J}, s2, 7"); E.e(f"s_lshr_b32 s{B}, s2, 3")
        T = S_T0
        if self.opt.cpf:
            E.e(f"s_cmp_lg_u32 s{S_W}, 7"); E.e("s_cbranch_scc1 L_nocpf")
            E.e("s_getpc_b64 s[100:101]")
            E.e(f"v_and_b32 v11, 31, v{L}"); E.e("v_lshlrev_b32 v11, 7, v11")
            E.e(f"s_lshl_b32 s{S_T0}, s{B}, 12"); E.e(f"v_add_u32 v11, s{S_T0}, v11")
            E.e(f"v_min_u32 v11, {self.opt.cpf * 1024}, v11")
            E.e("global_load_dword v255, v11, s[100:101]")
            E.lab("L_nocpf")
        E.e(f"s_lshr_b32 s{T}, s{B}, 1")
        for _ in range(2):
            E.e(f"s_sub_u32 s{T+1}, s{T}, 7"); E.e(f"s_cmp_ge_u32 s{T}, 7"); E.e(f"s_cselect_b32 s{T}, s{T+1}, s{T}")
        for kp in range(7):
            E.e(f"s_add_u32 s{T+1}, s{T}, {kp}"); E.e(f"s_sub_u32 s{T+2}, s{T+1}, 7"); E.e(f"s_cmp_ge_u32 s{T+1}, 7")
            E.e(f"s_cselect_b32 s{T+1}, s{T+2}, s{T+1}"); E.e(f"s_lshl_b32 s{S_ROT+kp}, s{T+1}, 19")
        E.e(f"s_add_u32 s{T+1}, s{T}, s{S_W}"); E.e(f"s_sub_u32 s{T+2}, s{T+1}, 7"); E.e(f"s_cmp_ge_u32 s{T+1}, 7")
        E.e(f"s_cselect_b32 s{T+1}, s{T+2}, s{T+1}"); E.e(f"s_lshl_b32 s99, s{T+1}, 7")
        E.e(f"s_mul_i32 s{S_WOPF}, s{B}, {16*896}")
        E.e("s_waitcnt lgkmcnt(0)")
        E.e(f"s_bitcmp1_b32 s{B}, 0")
        for pi in (0, 3):
            a_, b_ = S_PTR + 2 * pi, S_PTR + 2 * (pi + 5)
            E.e(f"s_cselect_b64 s[{T}:{T+1}], s[{b_}:{b_+1}], s[{a_}:{a_+1}]")
            E.e(f"s_cselect_b64 s[{b_}:{b_+1}], s[{a_}:{a_+1}], s[{b_}:{b_+1}]")
            E.e(f"s_mov_b64 s[{a_}:{a_+1}], s[{T}:{T+1}]")
        for ty, pb in (("A", 0), ("B", 5)):
            E.e(f"s_mul_i32 s{T}, s{B}, 71680"); E.e(f"s_add_u32 s{T}, s{T}, s99")
            self.srd(ty + "X", pb + 0, T, 32 * 71680, True)
            E.e(f"s_lshl_b32 s{T+1}, s{S_W}, 7")
            E.e(f"s_lshl_b32 s{T}, s{J}, 10"); E.e(f"s_add_u32 s{T}, s{T}, s{T+1}")
            self.srd(ty + "WQ", pb + 3, T, 448 * 8192)
            E.e(f"s_mul_i32 s{T}, s{J}, {512*896}"); E.e(f"s_add_u32 s{T}, s{T}, s{T+1}")
            self.srd(ty + "WO", pb + 4, T, 4096 * 896, True)
            if ty == "A":
                tot = 32 * 8 * 262144
                E.e(f"s_lshl_b32 s{T+2}, s2, 18"); E.e(f"s_lshl_b32 s{T}, s{S_I}, 13")
            else:
                tot = 32 * 16 * 262144
                E.e(f"s_lshl_b32 s{T+2}, s2, 19"); E.e(f"s_lshl_b32 s{T}, s{S_I}, 18")
            E.e(f"s_add_u32 s{T+2}, s{T+2}, s{T}")
            E.e(f"s_lshl_b32 s{T}, s{S_J}, 15"); E.e(f"s_add_u32 s{T}, s{T}, s{T+2}")
            self.srd(ty + "K", pb + 1, T, tot)
            E.e(f"s_lshl_b32 s{T}, s{S_J}, 7"); E.e(f"s_add_u32 s{T}, s{T}, s{T+2}")
            self.srd(ty + "V", pb + 2, T, tot)
            br = 0 if ty == "A" else 1
            E.e(f"s_add_u32 s{T}, s2, {br*256}"); E.e(f"s_mul_i32 s{T}, s{T}, {PART}"); E.e(f"s_add_u32 s{T}, s{T}, s{S_WB}")
            self.srd(ty + "P", 12, T, 512 * PART, True)
        E.e(f"s_lshr_b32 s{T}, s{B}, 1"); E.e(f"s_add_u32 s{T}, s{T}, s{J}"); E.e(f"s_and_b32 s{T}, s{T}, 3")
        for c in range(4):
            E.e(f"s_add_u32 s{T+1}, s{T}, {c}"); E.e(f"s_and_b32 s{T+1}, s{T+1}, 3"); E.e(f"s_lshl_b32 s{S_KC+c}, s{T+1}, 7")
        E.e(f"s_sub_u32 s{T+1}, s{S_J}, s{T}"); E.e(f"s_and_b32 s{T+1}, s{T+1}, 3"); E.e(f"s_mul_i32 s{T+1}, s{T+1}, 10240")
        E.e(f"s_mul_i32 s{S_WB_Q}, s{S_I}, 40960"); E.e(f"s_add_u32 s{S_WB_Q}, s{S_WB_Q}, s{T+1}")
        if self.opt.orot: E.e(f"s_lshr_b32 s{T}, s{B}, 1")
        else: E.e(f"s_mov_b32 s{T}, 0")
        for c in range(8):
            E.e(f"s_add_u32 s{T+1}, s{T}, {c}"); E.e(f"s_and_b32 s{T+1}, s{T+1}, 7"); E.e(f"s_mul_i32 s{S_RO+c}, s{T+1}, {64*896}")
        E.e(f"s_sub_u32 s{T+1}, s{S_W}, s{T}"); E.e(f"s_and_b32 s{T+1}, s{T+1}, 7"); E.e(f"s_mul_i32 s{S_WB_O}, s{T+1}, 10240")
        self.nst = 0
        if self.opt.stamps:
            E.e(f"v_mov_b32 v{V_ST}, 0")
            self.stamp()
            E.e(f"s_memrealtime s[{S_T2}:{S_T3}]"); E.e("s_waitcnt lgkmcnt(0)"); E.e(f"v_writelane_b32 v{V_ST}, s{S_T2}, 62")
        if self.opt.prio:
            E.e(f"s_cmp_ge_u32 s{S_W}, 4"); E.e("s_cbranch_scc0 L_noprio"); E.e("s_setprio 1"); E.lab("L_noprio")
        E.e(f"s_and_b32 s{S_PAR}, s{B}, 1")

    def wo_touch(self):
        E = self.E
        E.e(f"v_and_b32 v{V_T0+3}, 15, v{V_LANE}")
        E.e(f"v_mul_u32_u24 v{V_T0+3}, 896, v{V_T0+3}")
        for tt in "AB": E.vm(f"buffer_load_dword v255, v{V_T0+3}, {sr(SRD[tt+'WO'])}, s{S_WOPF} offen", "T")

    def program(self, t1, t2):
        E = self.E
        self.prog = t1 + t2
        E.q = []; E.vq = []; E.st = 0
        self.flags = set()
        self.st = round_stream(t1) + round_stream(t2)
        self.plan_units()
        self.nst = 1
        fs = self.opt.fstart
        if fs:
            self.ufree = 2; self.pump()
            E.e("s_barrier")
            self.untracked = True
            E.e(f"s_cmp_ge_u32 s{S_W}, 4"); E.e(f"s_cbranch_scc1 L_xa")
            self.x_load(t1)
            E.lab(f"L_xa")
            self.untracked = False
            self.ufree = 4; self.pump()
            self.x_addr(V_T0)
            for unit in range(2): self.site_rd(0, unit)
            E.e(f"s_cmp_ge_u32 s{S_W}, 4"); E.e(f"s_cbranch_scc1 L_xs")
            for f in range(10): E.e(self.xw_ins(V_T0, f))
            E.lab(f"L_xs")
        else:
            self.pump()
            self.x_load(t1)
            self.x_addr(V_T0)
            for unit in range(2):
                self.site_rd(0, unit); self.site_rf(0, unit)
            for f in range(10): self.x_write1(V_T0, f)
        if self.opt.wpf == 1: self.wo_touch()
        self.barrier()
        n = self.round(t1, 0, True, t2)
        n = self.round(t2, n, False, t1)
        assert n == len(self.st)
        l1, l2 = f"L_r{self.prog}1", f"L_r{self.prog}2"
        self.red_loads(t1, l1)
        E.vm_need("ST")
        self.barrier()
        self.signal(t2, f"L_sig{self.prog}b", self.opt.wsc)
        self.red_sum(t1, l1)
        self.stamp()
        self.poll(t2, l2, False, self.opt.wsc)
        self.stamp()
        self.red_loads(t2, l2)
        self.red_sum(t2, l2)
        if self.opt.stamps:
            E.e("s_waitcnt vmcnt(0)")
            self.stamp()
            E.e(f"s_memrealtime s[{S_T2}:{S_T3}]"); E.e("s_waitcnt lgkmcnt(0)"); E.e(f"v_writelane_b32 v{V_ST}, s{S_T2}, 63")
            E.e(f"s_lshl_b32 s{S_T0}, s2, 3"); E.e(f"s_add_u32 s{S_T0}, s{S_T0}, s{S_W}"); E.e(f"s_lshl_b32 s{S_T0}, s{S_T0}, 8")
            E.e(f"s_add_u32 s{S_T0}, s{S_T0}, {64<<20}")
            E.e(f"v_lshlrev_b32 v0, 2, v{V_LANE}"); E.e(f"v_add_u32 v0, s{S_T0}, v0")
            E.e(f"global_store_dword v0, v{V_ST}, s[{P_WS}:{P_WS+1}]")
        E.e("s_endpgm")

    def build(self):
        E = self.E
        k = NAME + "_kernel"
        head = HDR + f"; @launch grid=(256,1,1) block=(512,1,1) lds={LDS_TOTAL}\n" + '.amdgcn_target "amdgcn-amd-amdhsa--gfx950"\n'
        E.L += [".text", f".globl {k}", ".p2align 8", f".type {k},@function", f"{k}:"]
        self.upend = None
        self.setup()
        head_l = E.L
        progs = {}
        for p in ("AB", "BA"):
            E.L = []; self.program(p[0], p[1]); progs[p] = E.L
        pa, pb = progs["AB"], progs["BA"]
        n = 0
        while pa[n] == pb[n]: n += 1
        n -= self.opt.seam
        while not pa[n].startswith("v_mfma"): n -= 1
        f, j = ("BA", "AB") if self.opt.bafirst else ("AB", "BA")
        E.L = head_l + pa[:n] + [f"s_cmp_eq_u32 s{S_PAR}, {0 if j == 'AB' else 1}", "s_cbranch_scc1 L_other"] + progs[f][n:] + ["L_exit:", "s_endpgm", "L_other:"] + progs[j][n:]
        print("common prefix", n, "of", len(pa), file=sys.stderr)
        tail = ['.section .rodata,"a"', ".p2align 6", f".amdhsa_kernel {k}", "  .amdhsa_next_free_vgpr 256", "  .amdhsa_next_free_sgpr 102",
                "  .amdhsa_accum_offset 256", "  .amdhsa_group_segment_fixed_size 0", "  .amdhsa_kernarg_size 104",
                "  .amdhsa_user_sgpr_count 2", "  .amdhsa_user_sgpr_kernarg_segment_ptr 1",
                "  .amdhsa_system_sgpr_workgroup_id_x 1", "  .amdhsa_float_denorm_mode_32 3", ".end_amdhsa_kernel"]
        return head + "\n".join(E.L + tail) + "\n"

def main():
    ap = argparse.ArgumentParser()
    ap.add_argument("-o", default=f"cdna_kernels/{NAME}.s")
    ap.add_argument("--stamps", action="store_true")
    ap.add_argument("--xpv", default="")
    ap.add_argument("--nont", default="")
    for nm, d in (("wpf", 0), ("xpf", 0), ("wqnt", 0), ("prio", 0), ("s0", 1), ("s1", 6), ("s2", 8), ("s3", 13), ("sh0", 4), ("eb", 28),
                  ("nex", 5), ("bafirst", 1), ("seam", 0), ("orot", 1), ("flip", 0), ("wsc", 1), ("wss", 4352), ("slp", 4), ("td", 5), ("mo", 1), ("xp0", 172), ("xps", 20), ("fstart", 1), ("xw2", 70), ("xb2", 110), ("cpf", 0), ("nexb", 1), ("x1nt", 0), ("x2nt", 0), ("wb", 0), ("sh2", 0), ("d0", 1), ("d1", 3), ("d2", 5), ("dst", 0), ("dst0", 2), ("dsts", 1), ("xop", 15), ("xops", 40), ("qin", 2)):
        ap.add_argument("--" + nm, type=int, default=d)
    opt = ap.parse_args()
    assert opt.nex >= 1
    open(opt.o, "w").write(Gen(opt).build())
if __name__ == "__main__": main()
```

```python
import sys, argparse

NAME = "concat_heads__gqa_block_cached__mha_block_cached__near_ridge"
HDR = open("cdna_kernels/%s.s.ref" % NAME).read().split("; Override launch geometry")[0]

ACC, ACC2, BF, AF = 0, 80, 160, 200
V_LPKV, V_LPWQ, V_LPWO = 232, 233, 234
V_LANE = 235
V_TR4, V_AK = 236, 240
V_BA, V_BB, V_BH = 242, 243, 244
V_ST = 245
V_M = 246
V_T0 = 251
LDS_RING = 81920
LDS_CELL = 147456
LDS_TOTAL = 163840
S_W = 3
S_RING0, S_RING1 = 4, 5
S_C = 6
S_WOPF = 7
S_T0, S_T1, S_T2, S_T3 = 8, 9, 10, 11
S_WB = 12
S_GOFF = 13
S_I, S_J = 14, 15
SRD = {}
_s = 16
for ty in "AB":
    for nm in ("X", "WQ", "K", "V", "WO", "P"):
        SRD[ty + nm] = _s; _s += 4
S_PTR = 64
S_ROT = 90
S_JX, S_B = 97, 98
P_OUT, P_DBG, P_WS = S_PTR + 20, S_PTR + 22, S_PTR + 24
PART = 71680
WSC = 40 << 20
S_KC = 66
S_WB_Q = 70
S_WB_O = 71
S_PAR = 72
S_RO = 76

def vr(b, n=4): return f"v[{b}:{b+n-1}]"
def sr(b, n=4): return f"s[{b}:{b+n-1}]"

class Em:
    def __init__(self):
        self.L = []; self.q = []; self.vq = []; self.st = 0
    def e(self, s): self.L.append(s)
    def lab(self, s): self.L.append(s + ":")
    def ds(self, text, dst=(), tag=None):
        self.e(text); self.q.append((set(dst), tag))
    def _wait_idx(self, idx):
        if idx < 0: return
        n = min(len(self.q) - 1 - idx, 15)
        self.e(f"s_waitcnt lgkmcnt({n})")
        self.q = self.q[len(self.q) - n:] if n > 0 else []
    def need(self, regs):
        regs = set(regs); idx = -1
        for i, (d, t) in enumerate(self.q):
            if d & regs: idx = i
        self._wait_idx(idx)
    def need_tag(self, tag):
        idx = -1
        for i, (d, t) in enumerate(self.q):
            if t == tag: idx = i
        self._wait_idx(idx)
    def drain(self):
        self.e("s_waitcnt lgkmcnt(0)"); self.q = []
    def vm(self, text, tag=None):
        self.e(text); self.vq.append(tag)
    def vm_need(self, tag):
        idx = -1
        for i, t in enumerate(self.vq):
            if t == tag: idx = i
        if idx < 0: return
        rest = self.vq[idx + 1:]
        n = sum(1 for t in rest if not (isinstance(t, str) and t.startswith("@")))
        assert n <= 63
        self.e(f"s_waitcnt vmcnt({n})")
        self.vq = rest
    def stmp(self):
        self.st ^= 1
        return S_T0 + self.st

def acc_reg(base, p, e, t): return base + ((p * 2 + e) * 5 + t) * 4

def seg_offsets(seg, k):
    if seg == "WQ": return [(32 * (k & 1) + r) * 8192 for r in (0, 16, 4, 20)]
    if seg == "K":
        hf, p = k >> 3, k & 1
        return [(256 * hf + 32 * p + 8 * b) * 512 for b in range(4)]
    if seg == "V": return [(32 * k + 8 * b) * 512 for b in range(4)]
    if seg == "WO": return [(32 * (k & 1) + 8 * b) * 896 for b in range(4)]
    raise ValueError(seg)
SEG_LP = {"WQ": V_LPWQ, "K": V_LPKV, "V": V_LPKV, "WO": V_LPWO}
SEG_NT = {"WQ": "", "K": " nt", "V": " nt", "WO": ""}

def round_stream(ty):
    return ([(ty, "WQ", k) for k in range(14)] + [(ty, "K", k) for k in range(16)] +
            [(ty, "V", k) for k in range(16)] + [(ty, "WO", k) for k in range(16)])

FR = [(p, t) for p in range(2) for t in range(5)]

class Gen:
    def __init__(self, opt):
        self.opt = opt; self.E = Em(); self.nst = 0

    def stamp(self):
        if not self.opt.stamps: return
        E = self.E
        E.drain()
        E.e(f"s_memtime s[{S_T2}:{S_T3}]"); E.e("s_waitcnt lgkmcnt(0)")
        E.e(f"v_writelane_b32 v{V_ST}, s{S_T2}, {self.nst}")
        E.e(f"s_memrealtime s[{S_T2}:{S_T3}]"); E.e("s_waitcnt lgkmcnt(0)")
        E.e(f"v_writelane_b32 v{V_ST}, s{S_T2}, {self.nst + 30}")
        self.nst += 1
    def barrier(self):
        self.E.drain(); self.E.e("s_barrier"); self.stamp()
        self.release_shared()

    def shared(self, n): return n < len(self.st) and self.st[n][0] == "A" and self.st[n][1] in ("K", "V")
    def plan_units(self):
        self.units = []; self.uidx = {}
        for n in range(len(self.st)):
            for u in ((0,) if self.shared(n) else (0, 1)):
                self.uidx[(n, u)] = len(self.units); self.units.append((n, u))
        self.unext = 0; self.ufree = 4; self.upend = None; self.rdmode = "own"; self.landed = -1
    def srd_of(self, ty, seg):
        if seg in ("X", "WQ"): return SRD[("A" if ty == self.prog[0] else "B") + seg]
        return SRD[ty + seg]
    def soff(self, pos, off):
        E = self.E
        ty, seg, k = pos
        s = E.stmp()
        if seg == "WQ": E.e(f"s_add_u32 s{s}, s{S_ROT + (k >> 1)}, {off}")
        elif seg == "K": E.e(f"s_add_u32 s{s}, s{S_KC + ((k >> 1) & 3)}, {off}")
        elif seg == "WO": E.e(f"s_add_u32 s{s}, s{S_RO + (k >> 1)}, {off}")
        else: E.e(f"s_mov_b32 s{s}, {off}")
        return s
    def pump(self):
        E = self.E
        while self.unext < min(self.ufree, len(self.units)):
            ui = self.unext; n, unit = self.units[ui]
            pos = self.st[n]; ty, seg, k = pos
            slot = ui & 3
            offs = seg_offsets(seg, k)
            lo0 = (slot & 1) * 2048
            if offs[2 * unit] - lo0 < 0:
                E.e(f"s_add_u32 m0, s{S_RING0 + (slot >> 1)}, {lo0}"); lo0 = 0
            else:
                E.e(f"s_mov_b32 m0, s{S_RING0 + (slot >> 1)}")
            for i in range(2):
                lo = lo0 + i * 1024
                go = offs[2 * unit + i] - lo
                assert go >= 0
                s = self.soff(pos, go)
                off = f" offset:{lo}" if lo else ""
                fl = " nt" if n < self.opt.wqnt else SEG_NT[seg]
                if ty + seg in self.opt.nont.split(","): fl = ""
                E.vm(f"buffer_load_dwordx4 v{SEG_LP[seg]}, {sr(self.srd_of(ty, seg))}, s{s} offen{off}{fl} lds", ("D", ui))
            self.unext += 1
    def set_rdmode(self, mode):
        if mode == self.rdmode: return
        for r in [V_TR4 + i for i in range(4)] + [V_AK, V_AK + 1]:
            self.E.e(f"{'v_subrev_u32' if mode == 'pair' else 'v_add_u32'} v{r}, s{S_GOFF}, v{r}")
        self.rdmode = mode
    def a_reads(self, n, unit, base, tag):
        E = self.E
        af = AF + (n & 1) * 16
        if self.st[n][1] != "K":
            for u in range(4):
                d = af + u * 4 + 2 * unit
                E.ds(f"ds_read_b64_tr_b16 {vr(d,2)}, v{V_TR4+u} offset:{base}", (d, d + 1), tag)
        else:
            for e in range(2):
                d = af + (unit * 2 + e) * 4
                E.ds(f"ds_read_b128 {vr(d)}, v{V_AK+e} offset:{base}", range(d, d + 4), tag)
    def release_shared(self, pump=True):
        if self.upend is not None:
            self.ufree = self.upend + 5; self.upend = None
            if pump: self.pump()
    def sh_bar(self, n):
        E = self.E
        if n <= self.landed: return
        m = n
        if self.opt.sh2 and self.shared(n + 1) and self.uidx[(n + 1, 0)] < self.unext: m = n + 1
        E.vm_need(("D", self.uidx[(m, 0)]))
        if self.upend is not None: E.need_tag(("A", self.upend))
        E.e("s_barrier")
        self.release_shared(False)
        self.landed = m
    def sh_rd(self, n, u):
        ui = self.uidx[(n, 0)]
        self.set_rdmode("pair")
        self.a_reads(n, u, (ui & 3) * 2048 + u * 32768, ("A", ui))
        self.upend = ui
    def site_rd(self, n, unit):
        E = self.E
        if n >= len(self.st): return
        assert not self.shared(n)
        if self.upend is not None:
            E.need_tag(("A", self.upend)); E.e("s_barrier"); self.release_shared()
        ui = self.uidx[(n, unit)]
        E.vm_need(("D", ui))
        self.set_rdmode("own")
        self.a_reads(n, unit, (ui & 3) * 2048, ("A", ui))
    def site_rf(self, n, unit):
        if n >= len(self.st) or self.shared(n): return
        ui = self.uidx[(n, unit)]
        if self.unext < len(self.units): self.E.need_tag(("A", ui))
        self.ufree = ui + 5
        self.pump()

    def std_sites(self, n, base=0):
        opt = self.opt
        if self.shared(n):
            return [(base + opt.sh0, "sb", n, 0), (base + opt.sh0 + opt.d0, "sr", n, 0), (base + opt.sh0 + opt.d1, "sr", n, 1), (base + opt.sh0 + opt.d2, "sp", n, 0)]
        return [(base + opt.s0, "rd", n, 0), (base + opt.s1, "rf", n, 0), (base + opt.s2, "rd", n, 1), (base + opt.s3, "rf", n, 1)]
    def fast_sites(self, n, base):
        if self.shared(n):
            return [(base, "sb", n, 0), (base, "sr", n, 0), (base + 1, "sr", n, 1), (base + 2, "sp", n, 0)]
        return [(base, "rd", n, 0), (base + 1, "rd", n, 1), (base + 6, "rf", n, 0), (base + 8, "rf", n, 1)]
    def do_site(self, what, n, unit):
        if what == "rd": self.site_rd(n, unit)
        elif what == "rf": self.site_rf(n, unit)
        elif what == "sb": self.sh_bar(n)
        elif what == "sr": self.sh_rd(n, unit)
        else: self.pump()
    def gemm(self, n0, steps, baddr, hooks=None, fence=None, pre=None, ns=10, merge=False, ns_late=None):
        E = self.E; opt = self.opt
        hooks = hooks if hooks is not None else {}
        flat = []; sites = {}
        nst = len(steps)
        for hs, ms in enumerate(steps):
            if merge and hs >= nst - 2: break
            for (i, w, n, u) in self.std_sites(n0 + hs + 1, len(flat)): sites.setdefault(i, []).append((w, n, u))
            flat += [m + (n0 + hs,) for m in ms]
        post = []
        if merge:
            base = len(flat)
            A_, B_ = steps[-2], steps[-1]
            na, nb_ = n0 + nst - 2, n0 + nst - 1
            def tile(st, n, t): return [m + (n,) for m in st[4 * t: 4 * t + 4]]
            order = [(A_, na, 0), (A_, na, 1), (A_, na, 2), (B_, nb_, 0), (B_, nb_, 1), (B_, nb_, 2), (A_, na, 3), (B_, nb_, 3), (A_, na, 4), (B_, nb_, 4)]
            self.tile_done = {}
            for (st, n, t) in order:
                flat += tile(st, n, t)
                if n == nb_: self.tile_done[t] = len(flat) - 1
            for (i, w, n, u) in self.fast_sites(nb_, base): sites.setdefault(i, []).append((w, n, u))
            for (i, w, n, u) in self.fast_sites(nb_ + 1, base + 35):
                if i < len(flat): sites.setdefault(i, []).append((w, n, u))
                else: post.append((w, n, u))
            if callable(merge): merge()
        loads = []; last = {}
        for i, m in enumerate(flat):
            if m[2] not in last: loads.append(m[2])
            last[m[2]] = i
        slot = {}; free = list(range(ns)); busy = []
        nxt = [0]; extra = [ns_late]
        def can(gi):
            k = nxt[0]
            if k >= len(loads): return False
            if fence and k >= fence[0] and fence[1] not in self.flags: return False
            if extra[0] and gi >= extra[0][0]:
                free.extend(range(ns, extra[0][1])); extra[0] = None
            for x in list(busy):
                if x[0] <= gi: busy.remove(x); free.append(x[1])
            return bool(free)
        def issue_b():
            k = loads[nxt[0]]; sl = free.pop(0); slot[k] = sl; busy.append((last[k], sl))
            d = BF + sl * 4
            v, off = baddr(k)
            E.ds(f"ds_read_b128 {vr(d)}, v{v} offset:{off}", range(d, d + 4), "B")
            nxt[0] += 1
        self.b_left = lambda: len(loads) - nxt[0]
        self.b_issued = lambda: nxt[0]
        while can(-1): issue_b()
        if pre: pre()
        for gi, (acc, aidx, bkey, cin, n) in enumerate(flat):
            a = AF + (n & 1) * 16 + aidx * 4
            assert bkey in slot, "B frag not loaded (fence too late)"
            b = BF + slot[bkey] * 4
            E.need(list(range(a, a + 4)) + list(range(b, b + 4)))
            c = vr(acc) if cin is None else cin
            E.e(f"v_mfma_f32_16x16x32_bf16 {vr(acc)}, {vr(a)}, {vr(b)}, {c}")
            for h in hooks.get(gi, ()): h()
            nb = 0
            while nb < 3 and can(gi): issue_b(); nb += 1
            for st in sites.get(gi, ()): self.do_site(*st)
        self.post = post
        E.e("s_nop 7")

    def ba_g(self, frag):
        return (V_BA, frag * 1024) if frag < 40 else (V_BB, (frag - 40) * 1024)

    XR = ACC2
    untracked = False
    def x_load(self, ty, only=None, fl="", t0=V_T0):
        E = self.E
        E.e(f"v_lshrrev_b32 v{t0}, 3, v{V_LANE}")
        E.e(f"v_bfe_u32 v{t0+1}, v{V_LANE}, 2, 1")
        E.e(f"v_xor_b32 v{t0}, v{t0}, v{t0+1}")
        E.e(f"v_mul_u32_u24 v{t0}, 896, v{t0}")
        E.e(f"v_and_b32 v{t0+1}, 7, v{V_LANE}")
        E.e(f"v_lshl_add_u32 v{t0}, v{t0+1}, 4, v{t0}")
        for t in range(5):
            if only is not None and t != only: continue
            for h in range(2):
                s = E.stmp()
                E.e(f"s_mov_b32 s{s}, {(16*t+8*h)*896}")
                d = self.XR + (t * 2 + h) * 4
                ins = f"buffer_load_dwordx4 {vr(d)}, v{t0}, {sr(self.srd_of(ty, 'X'))}, s{s} offen{fl}"
                if self.untracked: E.e(ins)
                else: E.vm(ins, "X")
    def x_addr(self, t0):
        E = self.E
        E.e(f"v_lshrrev_b32 v{t0}, 3, v{V_LANE}")
        E.e(f"v_bfe_u32 v{t0+1}, v{V_LANE}, 2, 1")
        E.e(f"v_xor_b32 v{t0}, v{t0}, v{t0+1}")
        E.e(f"v_and_b32 v{t0+2}, 3, v{V_LANE}")
        E.e(f"v_lshl_add_u32 v{t0}, v{t0+2}, 4, v{t0}")
        E.e(f"v_lshlrev_b32 v{t0+2}, 1, v{t0+2}")
        E.e(f"v_xor_b32 v{t0}, v{t0}, v{t0+2}")
        E.e(f"v_lshlrev_b32 v{t0}, 4, v{t0}")
        E.e(f"v_mul_u32_u24 v{t0+1}, 5120, v{t0+1}")
        E.e(f"v_add3_u32 v{t0}, v{t0}, v{t0+1}, s{S_WB}")
    def xw_ins(self, t0, f): return f"ds_write_b128 v{t0}, {vr(self.XR+f*4)} offset:{(f>>1)*1024 + (f&1)*128}"
    def x_write1(self, t0, f):
        self.E.vm_need("X")
        self.E.ds(self.xw_ins(t0, f))

    def q_addr(self):
        E = self.E; t0 = V_T0; m = V_M
        for up in range(2):
            E.e(f"v_lshrrev_b32 v{m}, 5, v{V_LANE}")
            E.e(f"v_add_u32 v{m}, {2*up}, v{m}")
            E.e(f"v_lshlrev_b32 v{m+1}, 1, v{m}")
            E.e(f"v_and_b32 v{m+2}, 15, v{V_LANE}")
            E.e(f"v_xor_b32 v{m+1}, v{m+2}, v{m+1}")
            E.e(f"v_lshl_add_u32 v{m+1}, v{m}, 4, v{m+1}")
            E.e(f"v_lshlrev_b32 v{m+1}, 4, v{m+1}")
            E.e(f"v_bfe_u32 v{m+2}, v{V_LANE}, 4, 1")
            E.e(f"v_lshl_add_u32 v{m+1}, v{m+2}, 3, v{m+1}")
            E.e(f"v_add_u32 v{t0+up}, s{S_WB_Q}, v{m+1}")
    def q_write_t(self, t):
        E = self.E; t0 = V_T0
        for p in range(2):
            for e in range(2):
                a = acc_reg(ACC, p, e, t)
                E.e(f"v_cvt_pk_bf16_f32 v{a}, v{a}, v{a+1}")
                E.e(f"v_cvt_pk_bf16_f32 v{a+1}, v{a+2}, v{a+3}")
                E.ds(f"ds_write_b64 v{t0+e}, {vr(a,2)} offset:{(p*5+t)*1024}")

    def stat_write(self, op, regs, region, tmp, va):
        E = self.E
        E.e(f"v_lshlrev_b32 v{va}, 4, v{V_LANE}")
        E.e(f"s_lshl_b32 s{S_T2}, s{S_I}, 11"); E.e(f"s_lshl_b32 s{S_T3}, s{S_J}, 2"); E.e(f"s_add_u32 s{S_T2}, s{S_T2}, s{S_T3}")
        E.e(f"s_add_u32 s{S_T2}, s{S_T2}, {LDS_CELL + region*4096}")
        E.e(f"v_add_u32 v{va}, s{S_T2}, v{va}")
        q = regs
        E.e(f"v_mov_b32 v{tmp}, v{q[4]}")
        E.e("s_nop 1")
        prs = [(q[0], q[2]), (q[1], q[3]), (q[4], tmp)]
        for (x, y) in prs: E.e(f"v_permlane32_swap_b32 v{x}, v{y}")
        for (x, y) in prs: E.e(f"{op} v{x}, v{x}, v{y}")
        E.e(f"v_mov_b32 v{tmp}, v{q[4]}")
        E.e("s_nop 1")
        l2 = [(q[0], q[1]), (q[4], tmp)]
        for (x, y) in l2: E.e(f"v_permlane16_swap_b32 v{x}, v{y}")
        for (x, y) in l2: E.e(f"{op} v{x}, v{x}, v{y}")
        for k, (x, y) in enumerate(l2):
            E.ds(f"ds_write_b32 v{va}, v{x} offset:{k*1024}")
    def stat_read(self, op3, op, regs, region, tmps, va):
        E = self.E
        E.e(f"v_and_b32 v{va}, 15, v{V_LANE}")
        E.e(f"v_lshlrev_b32 v{va}, 4, v{va}")
        E.e(f"s_lshl_b32 s{S_T2}, s{S_I}, 11"); E.e(f"s_add_u32 s{S_T2}, s{S_T2}, {LDS_CELL + region*4096}")
        E.e(f"v_add_u32 v{va}, s{S_T2}, v{va}")
        for g in range(5):
            E.ds(f"ds_read_b128 {vr(tmps[g])}, v{va} offset:{g*256}", range(tmps[g], tmps[g] + 4))
        for g in range(5):
            v = tmps[g]
            E.need(range(v, v + 4))
            if op3:
                E.e(f"{op} v{regs[g]}, v{v}, v{v+1}")
                E.e(f"{op3} v{regs[g]}, v{regs[g]}, v{v+2}, v{v+3}")
            else:
                E.e(f"v_pk_add_f32 {vr(v,2)}, {vr(v,2)}, {vr(v+2,2)}")
                E.e(f"{op} v{regs[g]}, v{v}, v{v+1}")
    def wr_addr(self, dst): self.E.e(f"v_add_u32 v{dst}, s{S_WB}, v{V_BA}")
    def pack(self, base, p, t):
        E = self.E
        a = acc_reg(base, p, 0, t); b = acc_reg(base, p, 1, t)
        E.e(f"v_cvt_pk_bf16_f32 v{a}, v{a}, v{a+1}")
        E.e(f"v_cvt_pk_bf16_f32 v{a+1}, v{a+2}, v{a+3}")
        E.e(f"v_cvt_pk_bf16_f32 v{a+2}, v{b}, v{b+1}")
        E.e(f"v_cvt_pk_bf16_f32 v{a+3}, v{b+2}, v{b+3}")
        return a

    def max_ins(self, base, init):
        mem = [[acc_reg(base, p, e, t) + r for p in range(2) for e in range(2) for r in range(4)] for t in range(5)]
        out = []
        for k in range(0, 16, 2):
            for t in range(5):
                if k == 0 and init: out.append(f"v_max_f32 v{V_M+t}, v{mem[t][0]}, v{mem[t][1]}")
                else: out.append(f"v_max3_f32 v{V_M+t}, v{V_M+t}, v{mem[t][k]}, v{mem[t][k+1]}")
        return out
    def exp_frag(self, base, p, t, ts, s, first, pk=False):
        regs = [acc_reg(base, p, e, t) + r for e in range(2) for r in range(4)]
        if pk:
            mp = (V_M + t) & ~1; h = (V_M + t) & 1
            o = [f"v_pk_fma_f32 {vr(r,2)}, {vr(r,2)}, s[{S_C}:{S_C+1}], {vr(mp,2)} op_sel:[0,0,{h}] op_sel_hi:[1,0,{h}] neg_lo:[0,0,1] neg_hi:[0,0,1]" for r in regs[::2]]
        else:
            o = [f"v_fma_f32 v{r}, v{r}, s{S_C}, -v{V_M+t}" for r in regs]
        o += [f"v_exp_f32 v{r}, v{r}" for r in regs]
        o.append(f"v_pk_add_f32 {vr(ts,2)}, {vr(regs[0],2)}, {vr(regs[2],2)}")
        o.append(f"v_pk_add_f32 {vr(ts+2,2)}, {vr(regs[4],2)}, {vr(regs[6],2)}")
        a, b = regs[0], regs[4]
        o += [f"v_cvt_pk_bf16_f32 v{a}, v{a}, v{a+1}", f"v_cvt_pk_bf16_f32 v{a+1}, v{a+2}, v{a+3}",
              f"v_cvt_pk_bf16_f32 v{a+2}, v{b}, v{b+1}", f"v_cvt_pk_bf16_f32 v{a+3}, v{b+2}, v{b+3}"]
        o.append(f"v_pk_add_f32 {vr(ts,2)}, {vr(ts,2)}, {vr(ts+2,2)}")
        if first: o.append(f"v_add_f32 v{s}, v{ts}, v{ts+1}")
        else:
            o.append(f"v_add_f32 v{s}, v{s}, v{ts}")
            o.append(f"v_add_f32 v{s}, v{s}, v{ts+1}")
        return o
    def softmax(self, ty):
        E = self.E; opt = self.opt
        M = [V_M + t for t in range(5)]
        for i in self.max_ins(ACC2, False): E.e(i)
        self.stat_write("v_max_f32", M, 0, AF + 16, AF + 17)
        self.barrier()
        self.stat_read("v_max3_f32", "v_max_f32", M, 0, [BF + 4 * k for k in range(5)], AF + 17)
        for t in range(5): E.e(f"v_mul_f32 v{M[t]}, s{S_C}, v{M[t]}")
        S = [BF + 32 + t for t in range(5)]
        vw = BF + 37
        self.wr_addr(vw)
        for i, (p, t) in enumerate(FR):
            for ins in self.exp_frag(ACC, p, t, AF + 20 + 4 * (i & 1), S[t], p == 0, opt.pk & 1): E.e(ins)
            E.ds(f"ds_write_b128 v{vw}, {vr(acc_reg(ACC,p,0,t))} offset:{(p*5+t)*1024}")
        nex = opt.nex if ty == 'A' else opt.nexb
        for i, (p, t) in enumerate(FR[:nex]):
            for ins in self.exp_frag(ACC2, p, t, AF + 20 + 4 * (i & 1), S[t], False, opt.pk & 1): E.e(ins)
        self.barrier()
        hid = []
        for i, (p, t) in enumerate(FR[nex:]):
            ts = 252 if (i == 0 and nex == 0) else acc_reg(ACC2, FR[0][0], 1, FR[0][1])
            if i == 0 and nex == 0:
                pass
            hid += self.exp_frag(ACC2, p, t, ts, S[t], False, opt.pk & 2)
        def fin(): self.stat_write("v_add_f32", S, 1, BF + 38, BF + 39)
        return hid, fin, vw

    def o_write(self):
        E = self.E
        VS = V_M
        vw = V_T0 + 1
        E.e(f"v_add_u32 v{vw}, s{S_WB_O}, v{V_BA}")
        for t in range(5):
            for p in range(2):
                regs = [acc_reg(ACC, p, e, t) + r for e in range(2) for r in range(4)]
                if self.opt.pk & 4:
                    mp = (VS + t) & ~1; h = (VS + t) & 1
                    for r in regs[::2]: E.e(f"v_pk_mul_f32 {vr(r,2)}, {vr(r,2)}, {vr(mp,2)} op_sel:[0,{h}] op_sel_hi:[1,{h}]")
                else:
                    for r in regs: E.e(f"v_mul_f32 v{r}, v{r}, v{VS+t}")
                d = self.pack(ACC, p, t)
                E.ds(f"ds_write_b128 v{vw}, {vr(d)} offset:{(p*5+t)*1024}")
    def rinv(self):
        E = self.E
        M = [V_M + t for t in range(5)]
        self.stat_read(None, "v_add_f32", M, 1, [ACC2 + 60 + 4 * k for k in range(5)], V_T0 + 2)
        for t in range(5): E.e(f"v_rcp_f32 v{M[t]}, v{M[t]}")

    def part_store(self, ty, fl="sc1"):
        E = self.E
        va = V_T0 + 3
        E.e(f"v_lshlrev_b32 v{va}, 4, v{V_LANE}")
        for (p, t) in FR:
            d = self.pack(ACC, p, t)
            s = E.stmp()
            E.e(f"s_mov_b32 s{s}, {(p*5+t)*1024}")
            E.vm(f"buffer_store_dwordx4 {vr(d)}, v{va}, {sr(SRD[ty+'P'])}, s{s} offen {fl}", "ST")
        E.e("s_nop 1")

    def part_store_t(self, ty, t):
        E = self.E
        va = V_T0 + 3
        if t == 0: E.e(f"v_lshlrev_b32 v{va}, 4, v{V_LANE}")
        for p in range(2):
            d = self.pack(ACC, p, t)
            s = E.stmp()
            E.e(f"s_mov_b32 s{s}, {(p*5+t)*1024}")
            E.vm(f"buffer_store_dwordx4 {vr(d)}, v{va}, {sr(SRD[ty+'P'])}, s{s} offen sc1", "ST")
    def part_pack(self):
        E = self.E
        for i, (p, t) in enumerate(FR):
            a = acc_reg(ACC, p, 0, t); b = acc_reg(ACC, p, 1, t); d = ACC2 + 40 + 4 * i
            E.e(f"v_cvt_pk_bf16_f32 v{d}, v{a}, v{a+1}")
            E.e(f"v_cvt_pk_bf16_f32 v{d+1}, v{a+2}, v{a+3}")
            E.e(f"v_cvt_pk_bf16_f32 v{d+2}, v{b}, v{b+1}")
            E.e(f"v_cvt_pk_bf16_f32 v{d+3}, v{b+2}, v{b+3}")
    def part_store1(self, ty, i):
        E = self.E
        va = V_T0 + 3
        if i == 0: E.e(f"v_lshlrev_b32 v{va}, 4, v{V_LANE}")
        s = E.stmp()
        E.e(f"s_mov_b32 s{s}, {i*1024}")
        E.vm(f"buffer_store_dwordx4 {vr(ACC2+40+4*i)}, v{va}, {sr(SRD[ty+'P'])}, s{s} offen sc1", "ST")

    def cnt_addr(self, ty, ws):
        E = self.E
        if ws:
            E.e(f"s_mul_i32 s{S_T2}, s{S_B}, {self.opt.wss}"); E.e(f"s_add_u32 s{S_T2}, s{S_T2}, {WSC}")
            return f"s[{P_WS}:{P_WS+1}]", 0
        E.e(f"s_lshl_b32 s{S_T2}, s{S_B}, 2")
        return f"s[{P_DBG}:{P_DBG+1}]", (0 if ty == "A" else 128)
    def signal(self, ty, lab, ws=False):
        E = self.E
        E.e(f"s_cmp_lg_u32 s{S_W}, 0"); E.e(f"s_cbranch_scc1 {lab}")
        base, imm = self.cnt_addr(ty, ws)
        E.e(f"v_mov_b32 v{V_T0+2}, s{S_T2}"); E.e(f"v_mov_b32 v{V_T0+3}, 1")
        E.e("s_mov_b64 exec, 1")
        E.e(f"global_atomic_add v{V_T0+2}, v{V_T0+3}, {base} offset:{imm} sc1")
        E.e("s_mov_b64 exec, -1")
        E.lab(lab)
    def cnt_reset(self, lab):
        E = self.E
        E.e(f"s_or_b32 s{S_T2}, s{S_W}, s{S_JX}"); E.e(f"s_cmp_lg_u32 s{S_T2}, 0"); E.e(f"s_cbranch_scc1 {lab}")
        base, imm = self.cnt_addr("A", True)
        E.e(f"v_mov_b32 v{V_T0+2}, s{S_T2}"); E.e(f"v_mov_b32 v{V_T0+3}, 0")
        E.e("s_mov_b64 exec, 1")
        E.e(f"global_store_dword v{V_T0+2}, v{V_T0+3}, {base} sc1")
        E.e("s_mov_b64 exec, -1")
        E.lab(lab)

    def early_barrier(self):
        self.E.need_tag("B"); self.E.e("s_barrier")

    def round(self, ty, n0, first, other):
        E = self.E; opt = self.opt
        last = not first
        H = [{}]
        def add(idx, f): H[0].setdefault(idx, []).append(f)
        def spread(ins, i0, i1):
            n = len(ins)
            for k, x in enumerate(ins): add(i0 + (k * (i1 - i0)) // n, (lambda x=x: E.e(x)))
        def tr4(nk, keyf, cin0="0"):
            return [[(acc_reg(ACC, u >> 1, u & 1, t), u, keyf(k, t), cin0 if k == 0 else None) for t in range(5) for u in range(4)] for k in range(nk)]
        add(280 - 60, self.q_addr)
        add(280 - opt.eb, self.early_barrier)
        if last and not opt.dst: add(100, lambda: E.vm_need("ST"))
        if last and opt.dst == 2:
            for i in range(10): add(opt.dst0 + i * opt.dsts, (lambda i=i: self.part_store1(other, i)))
        for t in range(opt.qin): add(260 + 4 * t + 3 + 9, (lambda t=t: self.q_write_t(t)))
        pre = ((lambda: self.part_store(other, "" if opt.wb else "sc1")) if not opt.dst else self.part_pack) if last else None
        fence = None
        if first and opt.wpf > 1: add(opt.wpf, self.wo_touch)
        if first and opt.fstart:
            def pre():
                self.site_rf(0, 1)
                self.untracked = True
                E.e(f"s_cmp_lt_u32 s{S_W}, 4"); E.e(f"s_cbranch_scc1 L_xb")
                self.x_load(ty, t0=V_M)
                E.lab(f"L_xb")
                self.untracked = False
                E.vq.append("@X")
            def xw2():
                E.vm_need("@X")
                E.e(f"s_cmp_lt_u32 s{S_W}, 4"); E.e(f"s_cbranch_scc1 L_xt")
                for f in range(10): E.e(self.xw_ins(V_T0, f))
                E.lab(f"L_xt")
            def xb2():
                E.drain(); E.e("s_barrier"); self.flags.add("x2")
            add(opt.xw2, xw2); add(opt.xb2, xb2)
            fence = (40, "x2")
        self.gemm(n0, tr4(14, lambda k, t: k * 5 + t), self.ba_g, H[0], pre=pre, fence=fence)
        self.stamp()
        for t in range(opt.qin, 5): self.q_write_t(t)
        self.barrier()
        if last and not opt.dst: self.signal(other, f"L_sig{self.prog}a")
        if first and opt.wsc: self.cnt_reset(f"L_rst{self.prog}")
        nK = n0 + 14
        steps = []
        for k in range(16):
            hf, c, p = k >> 3, (k >> 1) & 3, k & 1
            acc = ACC if hf == 0 else ACC2
            steps.append([(acc_reg(acc, p, u, t), u * 2 + e, (hf, (2 * c + e) * 5 + t), "0" if (c == 0 and e == 0) else None)
                          for e in range(2) for t in range(5) for u in range(2)])
        ba = lambda k: (V_BH, k[1] * 1024)
        H[0] = {}
        spread(self.max_ins(ACC, True), 175, 255)
        if first and (opt.qt & 1): add(165, lambda: self.wq_touch(other))
        if last and opt.dst == 1:
            for i in range(10): add(opt.dst0 + i * opt.dsts, (lambda i=i: self.part_store1(other, i)))
        if last and opt.dst: add(300, lambda: E.vm_need("ST"))
        self.gemm(nK, steps, ba, H[0])
        self.stamp()
        if last and not opt.dst: self.flag_load(other, AF + 28, 255)
        hid, fin, vw = self.softmax(ty)
        if last and opt.dst: self.signal(other, f"L_sig{self.prog}a")
        nV = nK + 16
        H[0] = {}
        self.flags.discard("p2")
        look = 32
        e0 = 160 - look + look // 4
        spread(hid, 2, e0 - 14)
        add(e0 - 12, fin)
        add(e0, self.early_barrier)
        span = look - look // 4 - 2
        for i, (p, t) in enumerate(FR):
            add(e0 + (i * (span // 2)) // 10, (lambda p=p, t=t: E.ds(f"ds_write_b128 v{vw}, {vr(acc_reg(ACC2,p,0,t))} offset:{(p*5+t)*1024}", (), "W")))
        def bar2():
            E.need_tag("W"); E.e("s_barrier"); self.flags.add("p2")
        add(e0 + span, bar2)
        add(220, self.rinv)
        if first and (opt.qt & 2): add(5, lambda: self.wq_touch(other))
        if first and (opt.qt & 4): add(opt.qt2, lambda: self.wq_touch(other))
        add(320 - look + look // 4, self.early_barrier)
        xpv = first and ty in opt.xpv
        if xpv:
            for t in range(5): add(opt.xp0 + t * opt.xps, (lambda t=t: self.x_load(other, t)))
        if last: add(200, self.reduce_setup)
        if last: add(250, lambda: self.flag_check(other, f"L_f{self.prog}"))
        if last and opt.dst: add(300, lambda: self.flag_load(other, V_T0, 255))
        self.gemm(nV, tr4(16, lambda k, t: (k >> 3, (k & 7) * 5 + t)), ba, H[0], fence=(40, "p2"), ns=8)
        self.stamp()
        self.o_write()
        self.barrier()
        nO = nV + 16
        H[0] = {}
        if first:
            for t in range(0 if xpv else 5): add(opt.xop + t * opt.xops, (lambda t=t: self.x_load(other, t, " nt" if opt.x2nt else "")))
            add(320 - 60, lambda: self.x_addr(V_T0))
            add(320 - 30, self.early_barrier)
            for f in range(10): add(320 - 30 + f, (lambda f=f: self.x_write1(V_T0, f)))
        done = []
        def cb():
            for t in range(5):
                idx = self.tile_done[t] + opt.td
                if idx < 320:
                    if opt.td < 8: add(idx, lambda: E.e(f"s_nop {7 - opt.td}"))
                    add(idx, (lambda t=t: self.part_store_t(ty, t))); done.append(t)
        self.gemm(nO, tr4(16, lambda k, t: k * 5 + t), self.ba_g, H[0], merge=cb if (last and opt.mo) else False)
        if first: self.barrier()
        else:
            self.stamp()
            for t in range(5):
                if t not in done: self.part_store_t(ty, t)
        return nO + 16

    RO = 112
    def poll(self, ty, lab, allw, ws=False):
        E = self.E
        if not allw:
            E.e(f"s_cmp_lg_u32 s{S_W}, 0"); E.e(f"s_cbranch_scc1 {lab}go")
        base, imm = self.cnt_addr(ty, ws)
        E.e(f"v_mov_b32 v116, s{S_T2}")
        E.lab(f"{lab}poll")
        E.e("s_mov_b64 exec, 1")
        E.e(f"global_load_dword v117, v116, {base} offset:{imm} sc1")
        E.e("s_mov_b64 exec, -1")
        E.e("s_waitcnt vmcnt(0)")
        E.e(f"v_readfirstlane_b32 s{S_T2}, v117")
        E.e("s_nop 3")
        E.e(f"s_cmp_ge_u32 s{S_T2}, 8")
        E.e(f"s_cbranch_scc1 {lab}go")
        E.e(f"s_sleep {self.opt.slp}")
        E.e(f"s_branch {lab}poll")
        E.lab(f"{lab}go")
        if not allw: E.e("s_barrier")
    def flag_load(self, ty, va, vd):
        E = self.E
        self.fd = vd
        lab = f"L_fl{self.prog}"
        E.e(f"s_cmp_lg_u32 s{S_W}, 0"); E.e(f"s_cbranch_scc1 {lab}")
        base, imm = self.cnt_addr(ty, False)
        E.e(f"v_mov_b32 v{va}, s{S_T2}")
        E.e("s_mov_b64 exec, 1")
        E.e(f"global_load_dword v{vd}, v{va}, {base} offset:{imm} sc1")
        E.e("s_mov_b64 exec, -1")
        E.lab(lab)
        E.vq.append("@F")
    def flag_check(self, ty, lab):
        E = self.E
        E.vm_need("@F")
        E.e(f"s_cmp_lg_u32 s{S_W}, 0"); E.e(f"s_cbranch_scc1 {lab}go")
        E.e(f"v_readfirstlane_b32 s{S_T2}, v{self.fd}")
        E.e("s_nop 3")
        E.e(f"s_cmp_ge_u32 s{S_T2}, 8")
        E.e(f"s_cbranch_scc1 {lab}go")
        self.poll(ty, lab, True)
    def red_loads(self, ty, lab):
        E = self.E
        br = 0 if ty == "A" else 1
        E.e(f"s_add_u32 s{S_T2}, s{S_B}, {br*32}"); E.e(f"s_mul_i32 s{S_T2}, s{S_T2}, {8*PART}")
        E.e(f"s_add_u32 s16, s{P_WS}, s{S_T2}"); E.e(f"s_addc_u32 s17, s{P_WS+1}, 0"); E.e(f"s_mov_b32 s18, {8*PART}"); E.e("s_mov_b32 s19, 0x20000")
        for ps in (1, 0):
            base = 120 if ps == 0 else 80
            if ps == 1:
                E.e(f"s_cmp_lg_u32 s{S_W}, 7"); E.e(f"s_cbranch_scc1 {lab}p1")
            E.e(f"s_mov_b32 s{S_T2}, 0")
            for j in range(8):
                t = f"buffer_load_dwordx4 {vr(base+4*j)}, v{self.RO+ps}, s[16:19], s{S_T2} offen sc1"
                if ps == 1: E.e(t)
                else: E.vm(t, ("RL", j))
                if j < 7: E.e(f"s_add_u32 s{S_T2}, s{S_T2}, {PART}")
            if ps == 1: E.lab(f"{lab}p1")
    def red_sum(self, ty, lab):
        E = self.E
        br = 0 if ty == "A" else 1
        A = BF
        for ps in (1, 0):
            base = 120 if ps == 0 else 80
            if ps == 1:
                E.vm_need(("RL", 0))
                E.e(f"s_cmp_lg_u32 s{S_W}, 7"); E.e(f"s_cbranch_scc1 {lab}p2")
            for j in range(8):
                if ps == 0: E.vm_need(("RL", j))
                for k in range(4):
                    r = base + 4 * j + k
                    o = 0 if j == 0 else 8
                    E.e(f"v_lshlrev_b32 v{A+o+2*k}, 16, v{r}"); E.e(f"v_and_b32 v{A+o+1+2*k}, 0xffff0000, v{r}")
                if j:
                    for k in range(4): E.e(f"v_pk_add_f32 {vr(A+2*k,2)}, {vr(A+2*k,2)}, {vr(A+8+2*k,2)}")
            d = A + 16 + 4 * ps
            for k in range(4): E.e(f"v_cvt_pk_bf16_f32 v{d+k}, v{A+2*k}, v{A+1+2*k}")
            for h in range(2):
                t = f"buffer_store_dwordx2 {vr(d+2*h,2)}, v{self.RO+2+ps}, s[20:23], 0 offen offset:{br*896+32*h}"
                if ps == 1: E.e(t)
                else: E.vm(t, "OS")
            if ps == 1: E.lab(f"{lab}p2")
    def reduce_setup(self):
        E = self.E; R = self.RO
        E.e(f"s_mul_i32 s{S_T2}, s{S_B}, {80*1792}")
        E.e(f"s_add_u32 s20, s{P_OUT}, s{S_T2}"); E.e(f"s_addc_u32 s21, s{P_OUT+1}, 0"); E.e(f"s_mov_b32 s22, {80*1792}"); E.e("s_mov_b32 s23, 0x20000")
        E.e(f"s_mul_i32 s{S_T2}, s{S_JX}, 560")
        E.e(f"s_lshl_b32 s{S_T3}, s{S_W}, 6"); E.e(f"s_add_u32 s{S_T3}, s{S_T3}, s{S_T2}")
        E.e(f"s_add_u32 s{S_T2}, s{S_T2}, 512")
        E.e(f"v_add_u32 v104, s{S_T3}, v{V_LANE}")
        E.e(f"v_add_u32 v105, s{S_T2}, v{V_LANE}")
        for ps in range(2):
            it = 104 + ps
            E.e(f"v_lshlrev_b32 v{R+ps}, 4, v{it}")
            E.e(f"v_lshrrev_b32 v106, 6, v{it}")
            E.e(f"v_mul_u32_u24 v107, 205, v106"); E.e("v_lshrrev_b32 v107, 10, v107")
            E.e(f"v_mul_u32_u24 v108, 5, v107"); E.e("v_sub_u32 v108, v106, v108")
            E.e(f"v_and_b32 v109, 15, v{it}")
            E.e("v_lshl_add_u32 v108, v108, 4, v109")
            E.e("v_mul_u32_u24 v108, 1792, v108")
            E.e("v_lshl_add_u32 v108, v107, 6, v108")
            E.e(f"v_bfe_u32 v109, v{it}, 4, 2")
            E.e(f"v_lshl_add_u32 v{R+2+ps}, v109, 3, v108")
        E.e(f"v_cmp_gt_u32 vcc, 48, v{V_LANE}")
        E.e("v_mov_b32 v106, 0x7ff00000")
        E.e("s_nop 1")
        E.e(f"v_cndmask_b32 v{R+1}, v106, v{R+1}, vcc")
        E.e(f"v_cndmask_b32 v{R+3}, v106, v{R+3}, vcc")

    def srd(self, name, ptr, off_s, total, zero_w7=False):
        E = self.E; d = SRD[name]
        E.e(f"s_add_u32 s{d}, s{S_PTR+2*ptr}, s{off_s}")
        E.e(f"s_addc_u32 s{d+1}, s{S_PTR+2*ptr+1}, 0")
        E.e(f"s_sub_u32 s{d+2}, {total}, s{off_s}")
        E.e(f"s_mov_b32 s{d+3}, 0x20000")
        if zero_w7:
            E.e(f"s_cmp_eq_u32 s{S_W}, 7")
            E.e(f"s_cselect_b32 s{d+2}, 0, s{d+2}")

    def setup(self):
        E = self.E
        E.e("s_cmp_ge_u32 s2, 256"); E.e("s_cbranch_scc1 L_exit")
        E.e(f"s_load_dwordx16 s[{S_PTR}:{S_PTR+15}], s[0:1], 0")
        E.e(f"s_load_dwordx8 s[{S_PTR+16}:{S_PTR+23}], s[0:1], 64")
        E.e(f"s_load_dwordx2 s[{S_PTR+24}:{S_PTR+25}], s[0:1], 96")
        E.e(f"v_lshrrev_b32 v1, 6, v0")
        E.e(f"v_and_b32 v{V_LANE}, 63, v0")
        E.e(f"v_readfirstlane_b32 s{S_W}, v1")
        L = V_LANE
        E.e(f"v_and_b32 v1, 7, v{L}")
        E.e(f"v_lshrrev_b32 v2, 4, v{L}")
        E.e(f"v_lshlrev_b32 v3, 1, v2")
        E.e(f"v_xor_b32 v1, v1, v3")
        E.e(f"v_lshlrev_b32 v1, 4, v1")
        E.e(f"v_lshrrev_b32 v4, 3, v{L}")
        E.e(f"v_lshl_add_u32 v{V_LPKV}, v4, 9, v1")
        E.e(f"v_mul_u32_u24 v5, 896, v4")
        E.e(f"v_add_u32 v{V_LPWO}, v5, v1")
        E.e(f"v_and_b32 v5, 3, v4")
        E.e(f"v_lshrrev_b32 v6, 2, v4")
        E.e(f"v_lshl_add_u32 v5, v6, 3, v5")
        E.e(f"v_lshl_add_u32 v{V_LPWQ}, v5, 13, v1")
        E.e(f"s_lshl_b32 s{S_RING0}, s{S_W}, 13")
        E.e(f"s_add_u32 s{S_RING0}, s{S_RING0}, {LDS_RING}")
        E.e(f"s_add_u32 s{S_RING1}, s{S_RING0}, 4096")
        E.e(f"s_lshr_b32 s{S_I}, s{S_W}, 2")
        E.e(f"s_and_b32 s{S_J}, s{S_W}, 3")
        E.e(f"s_lshl_b32 s{S_GOFF}, s{S_I}, 15")
        E.e(f"v_bfe_u32 v5, v{L}, 2, 3")
        E.e(f"v_lshrrev_b32 v6, 1, v5")
        E.e(f"v_lshlrev_b32 v6, 1, v6")
        E.e(f"v_bfe_u32 v7, v{L}, 1, 1")
        E.e(f"v_xor_b32 v6, v6, v7")
        E.e(f"v_lshlrev_b32 v6, 4, v6")
        E.e(f"v_lshl_add_u32 v6, v5, 7, v6")
        E.e(f"v_and_b32 v8, 1, v{L}")
        E.e(f"v_lshl_add_u32 v6, v8, 3, v6")
        E.e(f"v_lshrrev_b32 v9, 5, v{L}")
        E.e(f"v_lshl_add_u32 v6, v9, 10, v6")
        E.e(f"v_add_u32 v{V_TR4}, s{S_RING0}, v6")
        for t in range(1, 4): E.e(f"v_xor_b32 v{V_TR4+t}, {t<<5}, v{V_TR4}")
        E.e(f"v_and_b32 v5, 15, v{L}")
        E.e(f"v_and_b32 v6, 6, v{L}")
        E.e(f"v_xor_b32 v6, v6, v2")
        E.e(f"v_lshlrev_b32 v6, 4, v6")
        E.e(f"v_lshl_add_u32 v6, v5, 7, v6")
        E.e(f"v_add_u32 v{V_AK}, s{S_RING0}, v6")
        E.e(f"v_xor_b32 v{V_AK+1}, 64, v{V_AK}")
        E.e(f"v_xor_b32 v6, v5, v3")
        E.e(f"v_lshl_add_u32 v6, v2, 4, v6")
        E.e(f"v_lshlrev_b32 v{V_BA}, 4, v6")
        E.e(f"v_add_u32 v{V_BB}, 40960, v{V_BA}")
        E.e(f"s_mul_i32 s{S_T0}, s{S_I}, 40960")
        E.e(f"v_add_u32 v{V_BH}, s{S_T0}, v{V_BA}")
        E.e(f"s_mul_i32 s{S_WB}, s{S_W}, 10240")
        E.e(f"s_mov_b32 s{S_C}, 0x3db8aa3b")
        J, B = S_JX, S_B
        E.e(f"s_and_b32 s{J}, s2, 7"); E.e(f"s_lshr_b32 s{B}, s2, 3")
        T = S_T0
        if self.opt.cpf:
            E.e(f"s_cmp_lg_u32 s{S_W}, 7"); E.e("s_cbranch_scc1 L_nocpf")
            E.e("s_getpc_b64 s[100:101]")
            E.e(f"v_and_b32 v11, 31, v{L}"); E.e("v_lshlrev_b32 v11, 7, v11")
            E.e(f"s_lshl_b32 s{S_T0}, s{B}, 12"); E.e(f"v_add_u32 v11, s{S_T0}, v11")
            E.e(f"v_min_u32 v11, {self.opt.cpf * 1024}, v11")
            E.e("global_load_dword v255, v11, s[100:101]")
            E.lab("L_nocpf")
        E.e(f"s_lshr_b32 s{T}, s{B}, 1")
        for _ in range(2):
            E.e(f"s_sub_u32 s{T+1}, s{T}, 7"); E.e(f"s_cmp_ge_u32 s{T}, 7"); E.e(f"s_cselect_b32 s{T}, s{T+1}, s{T}")
        for kp in range(7):
            E.e(f"s_add_u32 s{T+1}, s{T}, {kp}"); E.e(f"s_sub_u32 s{T+2}, s{T+1}, 7"); E.e(f"s_cmp_ge_u32 s{T+1}, 7")
            E.e(f"s_cselect_b32 s{T+1}, s{T+2}, s{T+1}"); E.e(f"s_lshl_b32 s{S_ROT+kp}, s{T+1}, 19")
        E.e(f"s_add_u32 s{T+1}, s{T}, s{S_W}"); E.e(f"s_sub_u32 s{T+2}, s{T+1}, 7"); E.e(f"s_cmp_ge_u32 s{T+1}, 7")
        E.e(f"s_cselect_b32 s{T+1}, s{T+2}, s{T+1}"); E.e(f"s_lshl_b32 s99, s{T+1}, 7")
        E.e(f"s_mul_i32 s{S_WOPF}, s{B}, {16*896}")
        E.e("s_waitcnt lgkmcnt(0)")
        E.e(f"s_bitcmp1_b32 s{B}, 0")
        for pi in (0, 3):
            a_, b_ = S_PTR + 2 * pi, S_PTR + 2 * (pi + 5)
            E.e(f"s_cselect_b64 s[{T}:{T+1}], s[{b_}:{b_+1}], s[{a_}:{a_+1}]")
            E.e(f"s_cselect_b64 s[{b_}:{b_+1}], s[{a_}:{a_+1}], s[{b_}:{b_+1}]")
            E.e(f"s_mov_b64 s[{a_}:{a_+1}], s[{T}:{T+1}]")
        for ty, pb in (("A", 0), ("B", 5)):
            E.e(f"s_mul_i32 s{T}, s{B}, 71680"); E.e(f"s_add_u32 s{T}, s{T}, s99")
            self.srd(ty + "X", pb + 0, T, 32 * 71680, True)
            E.e(f"s_lshl_b32 s{T+1}, s{S_W}, 7")
            E.e(f"s_lshl_b32 s{T}, s{J}, 10"); E.e(f"s_add_u32 s{T}, s{T}, s{T+1}")
            self.srd(ty + "WQ", pb + 3, T, 448 * 8192)
            E.e(f"s_mul_i32 s{T}, s{J}, {512*896}"); E.e(f"s_add_u32 s{T}, s{T}, s{T+1}")
            self.srd(ty + "WO", pb + 4, T, 4096 * 896, True)
            if ty == "A":
                tot = 32 * 8 * 262144
                E.e(f"s_lshl_b32 s{T+2}, s2, 18"); E.e(f"s_lshl_b32 s{T}, s{S_I}, 13")
            else:
                tot = 32 * 16 * 262144
                E.e(f"s_lshl_b32 s{T+2}, s2, 19"); E.e(f"s_lshl_b32 s{T}, s{S_I}, 18")
            E.e(f"s_add_u32 s{T+2}, s{T+2}, s{T}")
            E.e(f"s_lshl_b32 s{T}, s{S_J}, 15"); E.e(f"s_add_u32 s{T}, s{T}, s{T+2}")
            self.srd(ty + "K", pb + 1, T, tot)
            E.e(f"s_lshl_b32 s{T}, s{S_J}, 7"); E.e(f"s_add_u32 s{T}, s{T}, s{T+2}")
            self.srd(ty + "V", pb + 2, T, tot)
            br = 0 if ty == "A" else 1
            E.e(f"s_add_u32 s{T}, s2, {br*256}"); E.e(f"s_mul_i32 s{T}, s{T}, {PART}"); E.e(f"s_add_u32 s{T}, s{T}, s{S_WB}")
            self.srd(ty + "P", 12, T, 512 * PART, True)
        E.e(f"s_lshr_b32 s{T}, s{B}, 1"); E.e(f"s_add_u32 s{T}, s{T}, s{J}"); E.e(f"s_and_b32 s{T}, s{T}, 3")
        for c in range(4):
            E.e(f"s_add_u32 s{T+1}, s{T}, {c}"); E.e(f"s_and_b32 s{T+1}, s{T+1}, 3"); E.e(f"s_lshl_b32 s{S_KC+c}, s{T+1}, 7")
        E.e(f"s_sub_u32 s{T+1}, s{S_J}, s{T}"); E.e(f"s_and_b32 s{T+1}, s{T+1}, 3"); E.e(f"s_mul_i32 s{T+1}, s{T+1}, 10240")
        E.e(f"s_mul_i32 s{S_WB_Q}, s{S_I}, 40960"); E.e(f"s_add_u32 s{S_WB_Q}, s{S_WB_Q}, s{T+1}")
        if self.opt.orot: E.e(f"s_lshr_b32 s{T}, s{B}, 1")
        else: E.e(f"s_mov_b32 s{T}, 0")
        for c in range(8):
            E.e(f"s_add_u32 s{T+1}, s{T}, {c}"); E.e(f"s_and_b32 s{T+1}, s{T+1}, 7"); E.e(f"s_mul_i32 s{S_RO+c}, s{T+1}, {64*896}")
        E.e(f"s_sub_u32 s{T+1}, s{S_W}, s{T}"); E.e(f"s_and_b32 s{T+1}, s{T+1}, 7"); E.e(f"s_mul_i32 s{S_WB_O}, s{T+1}, 10240")
        self.nst = 0
        if self.opt.stamps:
            E.e(f"v_mov_b32 v{V_ST}, 0")
            self.stamp()
            E.e(f"s_memrealtime s[{S_T2}:{S_T3}]"); E.e("s_waitcnt lgkmcnt(0)"); E.e(f"v_writelane_b32 v{V_ST}, s{S_T2}, 62")
        if self.opt.prio:
            E.e(f"s_cmp_ge_u32 s{S_W}, 4"); E.e("s_cbranch_scc0 L_noprio"); E.e("s_setprio 1"); E.lab("L_noprio")
        E.e(f"s_and_b32 s{S_PAR}, s{B}, 1")

    def wo_touch(self):
        E = self.E
        E.e(f"v_and_b32 v{V_T0+3}, 15, v{V_LANE}")
        E.e(f"v_mul_u32_u24 v{V_T0+3}, 896, v{V_T0+3}")
        for tt in "AB": E.vm(f"buffer_load_dword v255, v{V_T0+3}, {sr(SRD[tt+'WO'])}, s{S_WOPF} offen", "T")

    def wq_touch(self, ty):
        E = self.E
        v = V_T0 + 3
        E.e(f"v_min_u32 v{v}, 27, v{V_LANE}"); E.e(f"v_lshlrev_b32 v{v}, 13, v{v}")
        E.e(f"s_lshr_b32 s{S_T2}, s{S_B}, 1"); E.e(f"s_mul_i32 s{S_T2}, s{S_T2}, {28*8192}")
        E.vm(f"buffer_load_dword v255, v{v}, {sr(self.srd_of(ty, 'WQ'))}, s{S_T2} offen", "T")

    def program(self, t1, t2):
        E = self.E
        self.prog = t1 + t2
        E.q = []; E.vq = []; E.st = 0
        self.flags = set()
        self.st = round_stream(t1) + round_stream(t2)
        self.plan_units()
        self.nst = 1
        fs = self.opt.fstart
        if fs:
            self.ufree = 2; self.pump()
            E.e("s_barrier")
            self.untracked = True
            E.e(f"s_cmp_ge_u32 s{S_W}, 4"); E.e(f"s_cbranch_scc1 L_xa")
            self.x_load(t1)
            E.lab(f"L_xa")
            self.untracked = False
            self.ufree = 4; self.pump()
            self.x_addr(V_T0)
            for unit in range(2): self.site_rd(0, unit)
            E.e(f"s_cmp_ge_u32 s{S_W}, 4"); E.e(f"s_cbranch_scc1 L_xs")
            for f in range(10): E.e(self.xw_ins(V_T0, f))
            E.lab(f"L_xs")
        else:
            self.pump()
            self.x_load(t1)
            self.x_addr(V_T0)
            for unit in range(2):
                self.site_rd(0, unit); self.site_rf(0, unit)
            for f in range(10): self.x_write1(V_T0, f)
        if self.opt.wpf == 1: self.wo_touch()
        self.barrier()
        n = self.round(t1, 0, True, t2)
        n = self.round(t2, n, False, t1)
        assert n == len(self.st)
        l1, l2 = f"L_r{self.prog}1", f"L_r{self.prog}2"
        self.red_loads(t1, l1)
        E.vm_need("ST")
        self.barrier()
        self.signal(t2, f"L_sig{self.prog}b", self.opt.wsc)
        self.red_sum(t1, l1)
        self.stamp()
        self.poll(t2, l2, False, self.opt.wsc)
        self.stamp()
        self.red_loads(t2, l2)
        self.red_sum(t2, l2)
        if self.opt.stamps:
            E.e("s_waitcnt vmcnt(0)")
            self.stamp()
            E.e(f"s_memrealtime s[{S_T2}:{S_T3}]"); E.e("s_waitcnt lgkmcnt(0)"); E.e(f"v_writelane_b32 v{V_ST}, s{S_T2}, 63")
            E.e(f"s_lshl_b32 s{S_T0}, s2, 3"); E.e(f"s_add_u32 s{S_T0}, s{S_T0}, s{S_W}"); E.e(f"s_lshl_b32 s{S_T0}, s{S_T0}, 8")
            E.e(f"s_add_u32 s{S_T0}, s{S_T0}, {64<<20}")
            E.e(f"v_lshlrev_b32 v0, 2, v{V_LANE}"); E.e(f"v_add_u32 v0, s{S_T0}, v0")
            E.e(f"global_store_dword v0, v{V_ST}, s[{P_WS}:{P_WS+1}]")
        E.e("s_endpgm")

    def build(self):
        E = self.E
        k = NAME + "_kernel"
        head = HDR + f"; @launch grid=(256,1,1) block=(512,1,1) lds={LDS_TOTAL}\n" + '.amdgcn_target "amdgcn-amd-amdhsa--gfx950"\n'
        E.L += [".text", f".globl {k}", ".p2align 8", f".type {k},@function", f"{k}:"]
        self.upend = None
        self.setup()
        head_l = E.L
        progs = {}
        for p in ("AB", "BA"):
            E.L = []; self.program(p[0], p[1]); progs[p] = E.L
        pa, pb = progs["AB"], progs["BA"]
        n = 0
        while pa[n] == pb[n]: n += 1
        n -= self.opt.seam
        while not pa[n].startswith("v_mfma"): n -= 1
        f, j = ("BA", "AB") if self.opt.bafirst else ("AB", "BA")
        E.L = head_l + pa[:n] + [f"s_cmp_eq_u32 s{S_PAR}, {0 if j == 'AB' else 1}", "s_cbranch_scc1 L_other"] + progs[f][n:] + ["L_exit:", "s_endpgm", "L_other:"] + progs[j][n:]
        print("common prefix", n, "of", len(pa), file=sys.stderr)
        tail = ['.section .rodata,"a"', ".p2align 6", f".amdhsa_kernel {k}", "  .amdhsa_next_free_vgpr 256", "  .amdhsa_next_free_sgpr 102",
                "  .amdhsa_accum_offset 256", "  .amdhsa_group_segment_fixed_size 0", "  .amdhsa_kernarg_size 104",
                "  .amdhsa_user_sgpr_count 2", "  .amdhsa_user_sgpr_kernarg_segment_ptr 1",
                "  .amdhsa_system_sgpr_workgroup_id_x 1", "  .amdhsa_float_denorm_mode_32 3", ".end_amdhsa_kernel"]
        return head + "\n".join(E.L + tail) + "\n"

def main():
    ap = argparse.ArgumentParser()
    ap.add_argument("-o", default=f"cdna_kernels/{NAME}.s")
    ap.add_argument("--stamps", action="store_true")
    ap.add_argument("--xpv", default="")
    ap.add_argument("--nont", default="")
    for nm, d in (("wpf", 0), ("xpf", 0), ("wqnt", 0), ("prio", 0), ("s0", 1), ("s1", 6), ("s2", 8), ("s3", 13), ("sh0", 4), ("eb", 28),
                  ("nex", 5), ("qt", 0), ("qt2", 240), ("pk", 1), ("bafirst", 1), ("seam", 0), ("orot", 1), ("flip", 0), ("wsc", 1), ("wss", 4352), ("slp", 4), ("td", 5), ("mo", 1), ("xp0", 172), ("xps", 20), ("fstart", 1), ("xw2", 70), ("xb2", 110), ("cpf", 0), ("nexb", 1), ("x1nt", 0), ("x2nt", 0), ("wb", 0), ("sh2", 0), ("d0", 1), ("d1", 3), ("d2", 5), ("dst", 0), ("dst0", 2), ("dsts", 1), ("xop", 15), ("xops", 40), ("qin", 2)):
        ap.add_argument("--" + nm, type=int, default=d)
    opt = ap.parse_args()
    assert opt.nex >= 1
    open(opt.o, "w").write(Gen(opt).build())
if __name__ == "__main__": main()
```

```python
import sys, argparse

NAME = "concat_heads__gqa_block_cached__mha_block_cached__near_ridge"
HDR = open("cdna_kernels/%s.s.ref" % NAME).read().split("; Override launch geometry")[0]

ACC, ACC2, BF, AF = 0, 80, 160, 200
V_LPKV, V_LPWQ, V_LPWO = 232, 233, 234
V_LANE = 235
V_TR4, V_AK = 236, 240
V_BA, V_BB, V_BH = 242, 243, 244
V_ST = 245
V_M = 246
V_T0 = 251
LDS_RING = 81920
LDS_CELL = 147456
LDS_TOTAL = 163840
S_W = 3
S_RING0, S_RING1 = 4, 5
S_C = 6
S_WOPF = 7
S_T0, S_T1, S_T2, S_T3 = 8, 9, 10, 11
S_WB = 12
S_GOFF = 13
S_I, S_J = 14, 15
SRD = {}
_s = 16
for ty in "AB":
    for nm in ("X", "WQ", "K", "V", "WO", "P"):
        SRD[ty + nm] = _s; _s += 4
S_PTR = 64
S_ROT = 90
S_JX, S_B = 97, 98
P_OUT, P_DBG, P_WS = S_PTR + 20, S_PTR + 22, S_PTR + 24
PART = 71680
WSC = 40 << 20
S_KC = 66
S_WB_Q = 70
S_WB_O = 71
S_PAR = 72
S_RO = 76

def vr(b, n=4): return f"v[{b}:{b+n-1}]"
def sr(b, n=4): return f"s[{b}:{b+n-1}]"

class Em:
    def __init__(self):
        self.L = []; self.q = []; self.vq = []; self.st = 0
    def e(self, s): self.L.append(s)
    def lab(self, s): self.L.append(s + ":")
    def ds(self, text, dst=(), tag=None):
        self.e(text); self.q.append((set(dst), tag))
    def _wait_idx(self, idx):
        if idx < 0: return
        n = min(len(self.q) - 1 - idx, 15)
        self.e(f"s_waitcnt lgkmcnt({n})")
        self.q = self.q[len(self.q) - n:] if n > 0 else []
    def need(self, regs):
        regs = set(regs); idx = -1
        for i, (d, t) in enumerate(self.q):
            if d & regs: idx = i
        self._wait_idx(idx)
    def need_tag(self, tag):
        idx = -1
        for i, (d, t) in enumerate(self.q):
            if t == tag: idx = i
        self._wait_idx(idx)
    def drain(self):
        self.e("s_waitcnt lgkmcnt(0)"); self.q = []
    def vm(self, text, tag=None):
        self.e(text); self.vq.append(tag)
    def vm_need(self, tag):
        idx = -1
        for i, t in enumerate(self.vq):
            if t == tag: idx = i
        if idx < 0: return
        rest = self.vq[idx + 1:]
        n = sum(1 for t in rest if not (isinstance(t, str) and t.startswith("@")))
        assert n <= 63
        self.e(f"s_waitcnt vmcnt({n})")
        self.vq = rest
    def stmp(self):
        self.st ^= 1
        return S_T0 + self.st

def acc_reg(base, p, e, t): return base + ((p * 2 + e) * 5 + t) * 4

def seg_offsets(seg, k):
    if seg == "WQ": return [(32 * (k & 1) + r) * 8192 for r in (0, 16, 4, 20)]
    if seg == "K":
        hf, p = k >> 3, k & 1
        return [(256 * hf + 32 * p + 8 * b) * 512 for b in range(4)]
    if seg == "V": return [(32 * k + 8 * b) * 512 for b in range(4)]
    if seg == "WO": return [(32 * (k & 1) + 8 * b) * 896 for b in range(4)]
    raise ValueError(seg)
SEG_LP = {"WQ": V_LPWQ, "K": V_LPKV, "V": V_LPKV, "WO": V_LPWO}
SEG_NT = {"WQ": "", "K": " nt", "V": " nt", "WO": ""}

def round_stream(ty):
    return ([(ty, "WQ", k) for k in range(14)] + [(ty, "K", k) for k in range(16)] +
            [(ty, "V", k) for k in range(16)] + [(ty, "WO", k) for k in range(16)])

FR = [(p, t) for p in range(2) for t in range(5)]

class Gen:
    def __init__(self, opt):
        self.opt = opt; self.E = Em(); self.nst = 0

    def stamp(self):
        if not self.opt.stamps: return
        E = self.E
        E.drain()
        E.e(f"s_memtime s[{S_T2}:{S_T3}]"); E.e("s_waitcnt lgkmcnt(0)")
        E.e(f"v_writelane_b32 v{V_ST}, s{S_T2}, {self.nst}")
        E.e(f"s_memrealtime s[{S_T2}:{S_T3}]"); E.e("s_waitcnt lgkmcnt(0)")
        E.e(f"v_writelane_b32 v{V_ST}, s{S_T2}, {self.nst + 30}")
        self.nst += 1
    def barrier(self):
        self.E.drain(); self.E.e("s_barrier"); self.stamp()
        self.release_shared()

    def shared(self, n): return n < len(self.st) and self.st[n][0] == "A" and self.st[n][1] in ("K", "V")
    def plan_units(self):
        self.units = []; self.uidx = {}
        for n in range(len(self.st)):
            for u in ((0,) if self.shared(n) else (0, 1)):
                self.uidx[(n, u)] = len(self.units); self.units.append((n, u))
        self.unext = 0; self.ufree = 4; self.upend = None; self.rdmode = "own"; self.landed = -1
    def srd_of(self, ty, seg):
        if seg in ("X", "WQ"): return SRD[("A" if ty == self.prog[0] else "B") + seg]
        return SRD[ty + seg]
    def soff(self, pos, off):
        E = self.E
        ty, seg, k = pos
        s = E.stmp()
        if seg == "WQ": E.e(f"s_add_u32 s{s}, s{S_ROT + (k >> 1)}, {off}")
        elif seg == "K": E.e(f"s_add_u32 s{s}, s{S_KC + ((k >> 1) & 3)}, {off}")
        elif seg == "WO": E.e(f"s_add_u32 s{s}, s{S_RO + (k >> 1)}, {off}")
        else: E.e(f"s_mov_b32 s{s}, {off}")
        return s
    def pump(self):
        E = self.E
        while self.unext < min(self.ufree, len(self.units)):
            ui = self.unext; n, unit = self.units[ui]
            pos = self.st[n]; ty, seg, k = pos
            slot = ui & 3
            offs = seg_offsets(seg, k)
            lo0 = (slot & 1) * 2048
            if offs[2 * unit] - lo0 < 0:
                E.e(f"s_add_u32 m0, s{S_RING0 + (slot >> 1)}, {lo0}"); lo0 = 0
            else:
                E.e(f"s_mov_b32 m0, s{S_RING0 + (slot >> 1)}")
            for i in range(2):
                lo = lo0 + i * 1024
                go = offs[2 * unit + i] - lo
                assert go >= 0
                s = self.soff(pos, go)
                off = f" offset:{lo}" if lo else ""
                fl = " nt" if n < self.opt.wqnt else SEG_NT[seg]
                if ty + seg in self.opt.nont.split(","): fl = ""
                E.vm(f"buffer_load_dwordx4 v{SEG_LP[seg]}, {sr(self.srd_of(ty, seg))}, s{s} offen{off}{fl} lds", ("D", ui))
            self.unext += 1
    def set_rdmode(self, mode):
        if mode == self.rdmode: return
        for r in [V_TR4 + i for i in range(4)] + [V_AK, V_AK + 1]:
            self.E.e(f"{'v_subrev_u32' if mode == 'pair' else 'v_add_u32'} v{r}, s{S_GOFF}, v{r}")
        self.rdmode = mode
    def a_reads(self, n, unit, base, tag):
        E = self.E
        af = AF + (n & 1) * 16
        if self.st[n][1] != "K":
            for u in range(4):
                d = af + u * 4 + 2 * unit
                E.ds(f"ds_read_b64_tr_b16 {vr(d,2)}, v{V_TR4+u} offset:{base}", (d, d + 1), tag)
        else:
            for e in range(2):
                d = af + (unit * 2 + e) * 4
                E.ds(f"ds_read_b128 {vr(d)}, v{V_AK+e} offset:{base}", range(d, d + 4), tag)
    def release_shared(self, pump=True):
        if self.upend is not None:
            self.ufree = self.upend + 5; self.upend = None
            if pump: self.pump()
    def sh_bar(self, n):
        E = self.E
        if n <= self.landed: return
        m = n
        if self.opt.sh2 and self.shared(n + 1) and self.uidx[(n + 1, 0)] < self.unext: m = n + 1
        E.vm_need(("D", self.uidx[(m, 0)]))
        if self.upend is not None: E.need_tag(("A", self.upend))
        E.e("s_barrier")
        self.release_shared(False)
        self.landed = m
    def sh_rd(self, n, u):
        ui = self.uidx[(n, 0)]
        self.set_rdmode("pair")
        self.a_reads(n, u, (ui & 3) * 2048 + u * 32768, ("A", ui))
        self.upend = ui
    def site_rd(self, n, unit):
        E = self.E
        if n >= len(self.st): return
        assert not self.shared(n)
        if self.upend is not None:
            E.need_tag(("A", self.upend)); E.e("s_barrier"); self.release_shared()
        ui = self.uidx[(n, unit)]
        E.vm_need(("D", ui))
        self.set_rdmode("own")
        self.a_reads(n, unit, (ui & 3) * 2048, ("A", ui))
    def site_rf(self, n, unit):
        if n >= len(self.st) or self.shared(n): return
        ui = self.uidx[(n, unit)]
        dep = self.opt.dw if self.st[n][1] in ("WQ", "WO") else self.opt.dk
        if self.unext < len(self.units) and dep == 4: self.E.need_tag(("A", ui))
        elif self.unext < len(self.units): self.E.need_tag(("A", ui - (4 - dep)))
        self.ufree = max(self.ufree, ui + 1 + dep)
        self.pump()

    def std_sites(self, n, base=0):
        opt = self.opt
        if self.shared(n):
            return [(base + opt.sh0, "sb", n, 0), (base + opt.sh0 + opt.d0, "sr", n, 0), (base + opt.sh0 + opt.d1, "sr", n, 1), (base + opt.sh0 + opt.d2, "sp", n, 0)]
        return [(base + opt.s0, "rd", n, 0), (base + opt.s1, "rf", n, 0), (base + opt.s2, "rd", n, 1), (base + opt.s3, "rf", n, 1)]
    def fast_sites(self, n, base):
        if self.shared(n):
            return [(base, "sb", n, 0), (base, "sr", n, 0), (base + 1, "sr", n, 1), (base + 2, "sp", n, 0)]
        return [(base, "rd", n, 0), (base + 1, "rd", n, 1), (base + 6, "rf", n, 0), (base + 8, "rf", n, 1)]
    def do_site(self, what, n, unit):
        if what == "rd": self.site_rd(n, unit)
        elif what == "rf": self.site_rf(n, unit)
        elif what == "sb": self.sh_bar(n)
        elif what == "sr": self.sh_rd(n, unit)
        else: self.pump()
    def gemm(self, n0, steps, baddr, hooks=None, fence=None, pre=None, ns=10, merge=False, ns_late=None):
        E = self.E; opt = self.opt
        hooks = hooks if hooks is not None else {}
        flat = []; sites = {}
        nst = len(steps)
        for hs, ms in enumerate(steps):
            if merge and hs >= nst - 2: break
            for (i, w, n, u) in self.std_sites(n0 + hs + 1, len(flat)): sites.setdefault(i, []).append((w, n, u))
            flat += [m + (n0 + hs,) for m in ms]
        post = []
        if merge:
            base = len(flat)
            A_, B_ = steps[-2], steps[-1]
            na, nb_ = n0 + nst - 2, n0 + nst - 1
            def tile(st, n, t): return [m + (n,) for m in st[4 * t: 4 * t + 4]]
            order = [(A_, na, 0), (A_, na, 1), (A_, na, 2), (B_, nb_, 0), (B_, nb_, 1), (B_, nb_, 2), (A_, na, 3), (B_, nb_, 3), (A_, na, 4), (B_, nb_, 4)]
            self.tile_done = {}
            for (st, n, t) in order:
                flat += tile(st, n, t)
                if n == nb_: self.tile_done[t] = len(flat) - 1
            for (i, w, n, u) in self.fast_sites(nb_, base): sites.setdefault(i, []).append((w, n, u))
            for (i, w, n, u) in self.fast_sites(nb_ + 1, base + 35):
                if i < len(flat): sites.setdefault(i, []).append((w, n, u))
                else: post.append((w, n, u))
            if callable(merge): merge()
        loads = []; last = {}
        for i, m in enumerate(flat):
            if m[2] not in last: loads.append(m[2])
            last[m[2]] = i
        slot = {}; free = list(range(ns)); busy = []
        nxt = [0]; extra = [ns_late]
        def can(gi):
            k = nxt[0]
            if k >= len(loads): return False
            if fence and k >= fence[0] and fence[1] not in self.flags: return False
            if extra[0] and gi >= extra[0][0]:
                free.extend(range(ns, extra[0][1])); extra[0] = None
            for x in list(busy):
                if x[0] <= gi: busy.remove(x); free.append(x[1])
            return bool(free)
        def issue_b():
            k = loads[nxt[0]]; sl = free.pop(0); slot[k] = sl; busy.append((last[k], sl))
            d = BF + sl * 4
            v, off = baddr(k)
            E.ds(f"ds_read_b128 {vr(d)}, v{v} offset:{off}", range(d, d + 4), "B")
            nxt[0] += 1
        self.b_left = lambda: len(loads) - nxt[0]
        self.b_issued = lambda: nxt[0]
        while can(-1): issue_b()
        if pre: pre()
        for gi, (acc, aidx, bkey, cin, n) in enumerate(flat):
            a = AF + (n & 1) * 16 + aidx * 4
            assert bkey in slot, "B frag not loaded (fence too late)"
            b = BF + slot[bkey] * 4
            E.need(list(range(a, a + 4)) + list(range(b, b + 4)))
            c = vr(acc) if cin is None else cin
            E.e(f"v_mfma_f32_16x16x32_bf16 {vr(acc)}, {vr(a)}, {vr(b)}, {c}")
            for h in hooks.get(gi, ()): h()
            nb = 0
            while nb < 3 and can(gi): issue_b(); nb += 1
            for st in sites.get(gi, ()): self.do_site(*st)
        self.post = post
        E.e("s_nop 7")

    def ba_g(self, frag):
        return (V_BA, frag * 1024) if frag < 40 else (V_BB, (frag - 40) * 1024)

    XR = ACC2
    untracked = False
    def x_load(self, ty, only=None, fl="", t0=V_T0):
        E = self.E
        E.e(f"v_lshrrev_b32 v{t0}, 3, v{V_LANE}")
        E.e(f"v_bfe_u32 v{t0+1}, v{V_LANE}, 2, 1")
        E.e(f"v_xor_b32 v{t0}, v{t0}, v{t0+1}")
        E.e(f"v_mul_u32_u24 v{t0}, 896, v{t0}")
        E.e(f"v_and_b32 v{t0+1}, 7, v{V_LANE}")
        E.e(f"v_lshl_add_u32 v{t0}, v{t0+1}, 4, v{t0}")
        for t in range(5):
            if only is not None and t != only: continue
            for h in range(2):
                s = E.stmp()
                E.e(f"s_mov_b32 s{s}, {(16*t+8*h)*896}")
                d = self.XR + (t * 2 + h) * 4
                ins = f"buffer_load_dwordx4 {vr(d)}, v{t0}, {sr(self.srd_of(ty, 'X'))}, s{s} offen{fl}"
                if self.untracked: E.e(ins)
                else: E.vm(ins, "X")
    def x_addr(self, t0):
        E = self.E
        E.e(f"v_lshrrev_b32 v{t0}, 3, v{V_LANE}")
        E.e(f"v_bfe_u32 v{t0+1}, v{V_LANE}, 2, 1")
        E.e(f"v_xor_b32 v{t0}, v{t0}, v{t0+1}")
        E.e(f"v_and_b32 v{t0+2}, 3, v{V_LANE}")
        E.e(f"v_lshl_add_u32 v{t0}, v{t0+2}, 4, v{t0}")
        E.e(f"v_lshlrev_b32 v{t0+2}, 1, v{t0+2}")
        E.e(f"v_xor_b32 v{t0}, v{t0}, v{t0+2}")
        E.e(f"v_lshlrev_b32 v{t0}, 4, v{t0}")
        E.e(f"v_mul_u32_u24 v{t0+1}, 5120, v{t0+1}")
        E.e(f"v_add3_u32 v{t0}, v{t0}, v{t0+1}, s{S_WB}")
    def xw_ins(self, t0, f): return f"ds_write_b128 v{t0}, {vr(self.XR+f*4)} offset:{(f>>1)*1024 + (f&1)*128}"
    def x_write1(self, t0, f):
        self.E.vm_need("X")
        self.E.ds(self.xw_ins(t0, f))

    def q_addr(self):
        E = self.E; t0 = V_T0; m = V_M
        for up in range(2):
            E.e(f"v_lshrrev_b32 v{m}, 5, v{V_LANE}")
            E.e(f"v_add_u32 v{m}, {2*up}, v{m}")
            E.e(f"v_lshlrev_b32 v{m+1}, 1, v{m}")
            E.e(f"v_and_b32 v{m+2}, 15, v{V_LANE}")
            E.e(f"v_xor_b32 v{m+1}, v{m+2}, v{m+1}")
            E.e(f"v_lshl_add_u32 v{m+1}, v{m}, 4, v{m+1}")
            E.e(f"v_lshlrev_b32 v{m+1}, 4, v{m+1}")
            E.e(f"v_bfe_u32 v{m+2}, v{V_LANE}, 4, 1")
            E.e(f"v_lshl_add_u32 v{m+1}, v{m+2}, 3, v{m+1}")
            E.e(f"v_add_u32 v{t0+up}, s{S_WB_Q}, v{m+1}")
    def q_write_t(self, t):
        E = self.E; t0 = V_T0
        for p in range(2):
            for e in range(2):
                a = acc_reg(ACC, p, e, t)
                E.e(f"v_cvt_pk_bf16_f32 v{a}, v{a}, v{a+1}")
                E.e(f"v_cvt_pk_bf16_f32 v{a+1}, v{a+2}, v{a+3}")
                E.ds(f"ds_write_b64 v{t0+e}, {vr(a,2)} offset:{(p*5+t)*1024}")

    def stat_write(self, op, regs, region, tmp, va):
        E = self.E
        E.e(f"v_lshlrev_b32 v{va}, 4, v{V_LANE}")
        E.e(f"s_lshl_b32 s{S_T2}, s{S_I}, 11"); E.e(f"s_lshl_b32 s{S_T3}, s{S_J}, 2"); E.e(f"s_add_u32 s{S_T2}, s{S_T2}, s{S_T3}")
        E.e(f"s_add_u32 s{S_T2}, s{S_T2}, {LDS_CELL + region*4096}")
        E.e(f"v_add_u32 v{va}, s{S_T2}, v{va}")
        q = regs
        E.e(f"v_mov_b32 v{tmp}, v{q[4]}")
        E.e("s_nop 1")
        prs = [(q[0], q[2]), (q[1], q[3]), (q[4], tmp)]
        for (x, y) in prs: E.e(f"v_permlane32_swap_b32 v{x}, v{y}")
        for (x, y) in prs: E.e(f"{op} v{x}, v{x}, v{y}")
        E.e(f"v_mov_b32 v{tmp}, v{q[4]}")
        E.e("s_nop 1")
        l2 = [(q[0], q[1]), (q[4], tmp)]
        for (x, y) in l2: E.e(f"v_permlane16_swap_b32 v{x}, v{y}")
        for (x, y) in l2: E.e(f"{op} v{x}, v{x}, v{y}")
        for k, (x, y) in enumerate(l2):
            E.ds(f"ds_write_b32 v{va}, v{x} offset:{k*1024}")
    def stat_read(self, op3, op, regs, region, tmps, va):
        E = self.E
        E.e(f"v_and_b32 v{va}, 15, v{V_LANE}")
        E.e(f"v_lshlrev_b32 v{va}, 4, v{va}")
        E.e(f"s_lshl_b32 s{S_T2}, s{S_I}, 11"); E.e(f"s_add_u32 s{S_T2}, s{S_T2}, {LDS_CELL + region*4096}")
        E.e(f"v_add_u32 v{va}, s{S_T2}, v{va}")
        for g in range(5):
            E.ds(f"ds_read_b128 {vr(tmps[g])}, v{va} offset:{g*256}", range(tmps[g], tmps[g] + 4))
        for g in range(5):
            v = tmps[g]
            E.need(range(v, v + 4))
            if op3:
                E.e(f"{op} v{regs[g]}, v{v}, v{v+1}")
                E.e(f"{op3} v{regs[g]}, v{regs[g]}, v{v+2}, v{v+3}")
            else:
                E.e(f"v_pk_add_f32 {vr(v,2)}, {vr(v,2)}, {vr(v+2,2)}")
                E.e(f"{op} v{regs[g]}, v{v}, v{v+1}")
    def wr_addr(self, dst): self.E.e(f"v_add_u32 v{dst}, s{S_WB}, v{V_BA}")
    def pack(self, base, p, t):
        E = self.E
        a = acc_reg(base, p, 0, t); b = acc_reg(base, p, 1, t)
        E.e(f"v_cvt_pk_bf16_f32 v{a}, v{a}, v{a+1}")
        E.e(f"v_cvt_pk_bf16_f32 v{a+1}, v{a+2}, v{a+3}")
        E.e(f"v_cvt_pk_bf16_f32 v{a+2}, v{b}, v{b+1}")
        E.e(f"v_cvt_pk_bf16_f32 v{a+3}, v{b+2}, v{b+3}")
        return a

    def max_ins(self, base, init):
        mem = [[acc_reg(base, p, e, t) + r for p in range(2) for e in range(2) for r in range(4)] for t in range(5)]
        out = []
        for k in range(0, 16, 2):
            for t in range(5):
                if k == 0 and init: out.append(f"v_max_f32 v{V_M+t}, v{mem[t][0]}, v{mem[t][1]}")
                else: out.append(f"v_max3_f32 v{V_M+t}, v{V_M+t}, v{mem[t][k]}, v{mem[t][k+1]}")
        return out
    def exp_frag(self, base, p, t, ts, s, first, pk=False):
        regs = [acc_reg(base, p, e, t) + r for e in range(2) for r in range(4)]
        if pk:
            mp = (V_M + t) & ~1; h = (V_M + t) & 1
            o = [f"v_pk_fma_f32 {vr(r,2)}, {vr(r,2)}, s[{S_C}:{S_C+1}], {vr(mp,2)} op_sel:[0,0,{h}] op_sel_hi:[1,0,{h}] neg_lo:[0,0,1] neg_hi:[0,0,1]" for r in regs[::2]]
        else:
            o = [f"v_fma_f32 v{r}, v{r}, s{S_C}, -v{V_M+t}" for r in regs]
        o += [f"v_exp_f32 v{r}, v{r}" for r in regs]
        o.append(f"v_pk_add_f32 {vr(ts,2)}, {vr(regs[0],2)}, {vr(regs[2],2)}")
        o.append(f"v_pk_add_f32 {vr(ts+2,2)}, {vr(regs[4],2)}, {vr(regs[6],2)}")
        a, b = regs[0], regs[4]
        o += [f"v_cvt_pk_bf16_f32 v{a}, v{a}, v{a+1}", f"v_cvt_pk_bf16_f32 v{a+1}, v{a+2}, v{a+3}",
              f"v_cvt_pk_bf16_f32 v{a+2}, v{b}, v{b+1}", f"v_cvt_pk_bf16_f32 v{a+3}, v{b+2}, v{b+3}"]
        o.append(f"v_pk_add_f32 {vr(ts,2)}, {vr(ts,2)}, {vr(ts+2,2)}")
        if first: o.append(f"v_add_f32 v{s}, v{ts}, v{ts+1}")
        else:
            o.append(f"v_add_f32 v{s}, v{s}, v{ts}")
            o.append(f"v_add_f32 v{s}, v{s}, v{ts+1}")
        return o
    def softmax(self, ty):
        E = self.E; opt = self.opt
        M = [V_M + t for t in range(5)]
        for i in self.max_ins(ACC2, False): E.e(i)
        self.stat_write("v_max_f32", M, 0, AF + 16, AF + 17)
        self.barrier()
        self.stat_read("v_max3_f32", "v_max_f32", M, 0, [BF + 4 * k for k in range(5)], AF + 17)
        for t in range(5): E.e(f"v_mul_f32 v{M[t]}, s{S_C}, v{M[t]}")
        S = [BF + 32 + t for t in range(5)]
        vw = BF + 37
        self.wr_addr(vw)
        for i, (p, t) in enumerate(FR):
            for ins in self.exp_frag(ACC, p, t, AF + 20 + 4 * (i & 1), S[t], p == 0, opt.pk & 1): E.e(ins)
            E.ds(f"ds_write_b128 v{vw}, {vr(acc_reg(ACC,p,0,t))} offset:{(p*5+t)*1024}")
        nex = opt.nex if ty == 'A' else opt.nexb
        for i, (p, t) in enumerate(FR[:nex]):
            for ins in self.exp_frag(ACC2, p, t, AF + 20 + 4 * (i & 1), S[t], False, opt.pk & 1): E.e(ins)
        self.barrier()
        hid = []
        for i, (p, t) in enumerate(FR[nex:]):
            ts = 252 if (i == 0 and nex == 0) else acc_reg(ACC2, FR[0][0], 1, FR[0][1])
            if i == 0 and nex == 0:
                pass
            hid += self.exp_frag(ACC2, p, t, ts, S[t], False, opt.pk & 2)
        def fin(): self.stat_write("v_add_f32", S, 1, BF + 38, BF + 39)
        return hid, fin, vw

    def o_write(self):
        E = self.E
        VS = V_M
        vw = V_T0 + 1
        E.e(f"v_add_u32 v{vw}, s{S_WB_O}, v{V_BA}")
        for t in range(5):
            for p in range(2):
                regs = [acc_reg(ACC, p, e, t) + r for e in range(2) for r in range(4)]
                if self.opt.pk & 4:
                    mp = (VS + t) & ~1; h = (VS + t) & 1
                    for r in regs[::2]: E.e(f"v_pk_mul_f32 {vr(r,2)}, {vr(r,2)}, {vr(mp,2)} op_sel:[0,{h}] op_sel_hi:[1,{h}]")
                else:
                    for r in regs: E.e(f"v_mul_f32 v{r}, v{r}, v{VS+t}")
                d = self.pack(ACC, p, t)
                E.ds(f"ds_write_b128 v{vw}, {vr(d)} offset:{(p*5+t)*1024}")
    def rinv(self):
        E = self.E
        M = [V_M + t for t in range(5)]
        self.stat_read(None, "v_add_f32", M, 1, [ACC2 + 60 + 4 * k for k in range(5)], V_T0 + 2)
        for t in range(5): E.e(f"v_rcp_f32 v{M[t]}, v{M[t]}")

    def part_store(self, ty, fl="sc1"):
        E = self.E
        va = V_T0 + 3
        E.e(f"v_lshlrev_b32 v{va}, 4, v{V_LANE}")
        for (p, t) in FR:
            d = self.pack(ACC, p, t)
            s = E.stmp()
            E.e(f"s_mov_b32 s{s}, {(p*5+t)*1024}")
            E.vm(f"buffer_store_dwordx4 {vr(d)}, v{va}, {sr(SRD[ty+'P'])}, s{s} offen {fl}", "ST")
        E.e("s_nop 1")

    def part_store_t(self, ty, t):
        E = self.E
        va = V_T0 + 3
        if t == 0: E.e(f"v_lshlrev_b32 v{va}, 4, v{V_LANE}")
        for p in range(2):
            d = self.pack(ACC, p, t)
            s = E.stmp()
            E.e(f"s_mov_b32 s{s}, {(p*5+t)*1024}")
            E.vm(f"buffer_store_dwordx4 {vr(d)}, v{va}, {sr(SRD[ty+'P'])}, s{s} offen sc1", "ST")
    def part_pack(self):
        E = self.E
        for i, (p, t) in enumerate(FR):
            a = acc_reg(ACC, p, 0, t); b = acc_reg(ACC, p, 1, t); d = ACC2 + 40 + 4 * i
            E.e(f"v_cvt_pk_bf16_f32 v{d}, v{a}, v{a+1}")
            E.e(f"v_cvt_pk_bf16_f32 v{d+1}, v{a+2}, v{a+3}")
            E.e(f"v_cvt_pk_bf16_f32 v{d+2}, v{b}, v{b+1}")
            E.e(f"v_cvt_pk_bf16_f32 v{d+3}, v{b+2}, v{b+3}")
    def part_store1(self, ty, i):
        E = self.E
        va = V_T0 + 3
        if i == 0: E.e(f"v_lshlrev_b32 v{va}, 4, v{V_LANE}")
        s = E.stmp()
        E.e(f"s_mov_b32 s{s}, {i*1024}")
        E.vm(f"buffer_store_dwordx4 {vr(ACC2+40+4*i)}, v{va}, {sr(SRD[ty+'P'])}, s{s} offen sc1", "ST")

    def cnt_addr(self, ty, ws):
        E = self.E
        if ws:
            E.e(f"s_mul_i32 s{S_T2}, s{S_B}, {self.opt.wss}"); E.e(f"s_add_u32 s{S_T2}, s{S_T2}, {WSC}")
            return f"s[{P_WS}:{P_WS+1}]", 0
        E.e(f"s_lshl_b32 s{S_T2}, s{S_B}, 2")
        return f"s[{P_DBG}:{P_DBG+1}]", (0 if ty == "A" else 128)
    def signal(self, ty, lab, ws=False):
        E = self.E
        E.e(f"s_cmp_lg_u32 s{S_W}, 0"); E.e(f"s_cbranch_scc1 {lab}")
        base, imm = self.cnt_addr(ty, ws)
        E.e(f"v_mov_b32 v{V_T0+2}, s{S_T2}"); E.e(f"v_mov_b32 v{V_T0+3}, 1")
        E.e("s_mov_b64 exec, 1")
        E.e(f"global_atomic_add v{V_T0+2}, v{V_T0+3}, {base} offset:{imm} sc1")
        E.e("s_mov_b64 exec, -1")
        E.lab(lab)
    def cnt_reset(self, lab):
        E = self.E
        E.e(f"s_or_b32 s{S_T2}, s{S_W}, s{S_JX}"); E.e(f"s_cmp_lg_u32 s{S_T2}, 0"); E.e(f"s_cbranch_scc1 {lab}")
        base, imm = self.cnt_addr("A", True)
        E.e(f"v_mov_b32 v{V_T0+2}, s{S_T2}"); E.e(f"v_mov_b32 v{V_T0+3}, 0")
        E.e("s_mov_b64 exec, 1")
        E.e(f"global_store_dword v{V_T0+2}, v{V_T0+3}, {base} sc1")
        E.e("s_mov_b64 exec, -1")
        E.lab(lab)

    def early_barrier(self):
        self.E.need_tag("B"); self.E.e("s_barrier")

    def round(self, ty, n0, first, other):
        E = self.E; opt = self.opt
        last = not first
        H = [{}]
        def add(idx, f): H[0].setdefault(idx, []).append(f)
        def spread(ins, i0, i1):
            n = len(ins)
            for k, x in enumerate(ins): add(i0 + (k * (i1 - i0)) // n, (lambda x=x: E.e(x)))
        def tr4(nk, keyf, cin0="0"):
            return [[(acc_reg(ACC, u >> 1, u & 1, t), u, keyf(k, t), cin0 if k == 0 else None) for t in range(5) for u in range(4)] for k in range(nk)]
        add(280 - 60, self.q_addr)
        if opt.sb & 2: add(222, lambda: E.e("s_barrier"))
        add(280 - opt.eb, self.early_barrier)
        if last and not opt.dst: add(100, lambda: E.vm_need("ST"))
        if last and opt.dst == 2:
            for i in range(10): add(opt.dst0 + i * opt.dsts, (lambda i=i: self.part_store1(other, i)))
        for t in range(opt.qin): add(260 + 4 * t + 3 + 9, (lambda t=t: self.q_write_t(t)))
        pre = ((lambda: self.part_store(other, "" if opt.wb else "sc1")) if not opt.dst else self.part_pack) if last else None
        fence = None
        if first and opt.wpf > 1: add(opt.wpf, self.wo_touch)
        if first and opt.fstart:
            def pre():
                self.site_rf(0, 1)
                self.untracked = True
                E.e(f"s_cmp_lt_u32 s{S_W}, 4"); E.e(f"s_cbranch_scc1 L_xb")
                self.x_load(ty, t0=V_M)
                E.lab(f"L_xb")
                self.untracked = False
                E.vq.append("@X")
            def xw2():
                E.vm_need("@X")
                E.e(f"s_cmp_lt_u32 s{S_W}, 4"); E.e(f"s_cbranch_scc1 L_xt")
                for f in range(10): E.e(self.xw_ins(V_T0, f))
                E.lab(f"L_xt")
            def xb2():
                E.drain(); E.e("s_barrier"); self.flags.add("x2")
            add(opt.xw2, xw2); add(opt.xb2, xb2)
            fence = (40, "x2")
        self.gemm(n0, tr4(14, lambda k, t: k * 5 + t), self.ba_g, H[0], pre=pre, fence=fence)
        self.stamp()
        for t in range(opt.qin, 5): self.q_write_t(t)
        self.barrier()
        if last and not opt.dst: self.signal(other, f"L_sig{self.prog}a")
        if first and opt.wsc: self.cnt_reset(f"L_rst{self.prog}")
        nK = n0 + 14
        steps = []
        for k in range(16):
            hf, c, p = k >> 3, (k >> 1) & 3, k & 1
            acc = ACC if hf == 0 else ACC2
            steps.append([(acc_reg(acc, p, u, t), u * 2 + e, (hf, (2 * c + e) * 5 + t), "0" if (c == 0 and e == 0) else None)
                          for e in range(2) for t in range(5) for u in range(2)])
        ba = lambda k: (V_BH, k[1] * 1024)
        H[0] = {}
        spread(self.max_ins(ACC, True), 175, 255)
        if ty == "B" and (opt.sb & 1):
            for i in range(opt.sbn): add(opt.sbi - i * opt.sbs, lambda: E.e("s_barrier"))
        if first and (opt.qt & 1): add(165, lambda: self.wq_touch(other))
        if last and opt.dst == 1:
            for i in range(10): add(opt.dst0 + i * opt.dsts, (lambda i=i: self.part_store1(other, i)))
        if last and opt.dst: add(300, lambda: E.vm_need("ST"))
        self.gemm(nK, steps, ba, H[0])
        self.stamp()
        if last and not opt.dst: self.flag_load(other, AF + 28, 255)
        hid, fin, vw = self.softmax(ty)
        if last and opt.dst: self.signal(other, f"L_sig{self.prog}a")
        nV = nK + 16
        H[0] = {}
        self.flags.discard("p2")
        look = 32
        e0 = 160 - look + look // 4
        spread(hid, 2, e0 - 14)
        add(e0 - 12, fin)
        add(e0, self.early_barrier)
        span = look - look // 4 - 2
        for i, (p, t) in enumerate(FR):
            add(e0 + (i * (span // 2)) // 10, (lambda p=p, t=t: E.ds(f"ds_write_b128 v{vw}, {vr(acc_reg(ACC2,p,0,t))} offset:{(p*5+t)*1024}", (), "W")))
        def bar2():
            E.need_tag("W"); E.e("s_barrier"); self.flags.add("p2")
        add(e0 + span, bar2)
        add(220, self.rinv)
        if ty == "B" and (opt.sb & 4): add(opt.sbi, lambda: E.e("s_barrier"))
        if first and (opt.qt & 2): add(5, lambda: self.wq_touch(other))
        if first and (opt.qt & 4): add(opt.qt2, lambda: self.wq_touch(other))
        add(320 - look + look // 4, self.early_barrier)
        xpv = first and ty in opt.xpv
        if xpv:
            for t in range(5): add(opt.xp0 + t * opt.xps, (lambda t=t: self.x_load(other, t)))
        if last: add(200, self.reduce_setup)
        if last: add(250, lambda: self.flag_check(other, f"L_f{self.prog}"))
        if last and opt.dst: add(300, lambda: self.flag_load(other, V_T0, 255))
        self.gemm(nV, tr4(16, lambda k, t: (k >> 3, (k & 7) * 5 + t)), ba, H[0], fence=(40, "p2"), ns=8)
        self.stamp()
        self.o_write()
        self.barrier()
        nO = nV + 16
        H[0] = {}
        if first:
            for t in range(0 if xpv else 5): add(opt.xop + t * opt.xops, (lambda t=t: self.x_load(other, t, " nt" if opt.x2nt else "")))
            add(320 - 60, lambda: self.x_addr(V_T0))
            add(320 - 30, self.early_barrier)
            for f in range(10): add(320 - 30 + f, (lambda f=f: self.x_write1(V_T0, f)))
        done = []
        def cb():
            for t in range(5):
                idx = self.tile_done[t] + opt.td
                if idx < 320:
                    if opt.td < 8: add(idx, lambda: E.e(f"s_nop {7 - opt.td}"))
                    add(idx, (lambda t=t: self.part_store_t(ty, t))); done.append(t)
        self.gemm(nO, tr4(16, lambda k, t: k * 5 + t), self.ba_g, H[0], merge=cb if (last and opt.mo) else False)
        if first: self.barrier()
        else:
            self.stamp()
            for t in range(5):
                if t not in done: self.part_store_t(ty, t)
        return nO + 16

    RO = 112
    def poll(self, ty, lab, allw, ws=False):
        E = self.E
        if not allw:
            E.e(f"s_cmp_lg_u32 s{S_W}, 0"); E.e(f"s_cbranch_scc1 {lab}go")
        base, imm = self.cnt_addr(ty, ws)
        E.e(f"v_mov_b32 v116, s{S_T2}")
        E.lab(f"{lab}poll")
        E.e("s_mov_b64 exec, 1")
        E.e(f"global_load_dword v117, v116, {base} offset:{imm} sc1")
        E.e("s_mov_b64 exec, -1")
        E.e("s_waitcnt vmcnt(0)")
        E.e(f"v_readfirstlane_b32 s{S_T2}, v117")
        E.e("s_nop 3")
        E.e(f"s_cmp_ge_u32 s{S_T2}, 8")
        E.e(f"s_cbranch_scc1 {lab}go")
        E.e(f"s_sleep {self.opt.slp}")
        E.e(f"s_branch {lab}poll")
        E.lab(f"{lab}go")
        if not allw: E.e("s_barrier")
    def flag_load(self, ty, va, vd):
        E = self.E
        self.fd = vd
        lab = f"L_fl{self.prog}"
        E.e(f"s_cmp_lg_u32 s{S_W}, 0"); E.e(f"s_cbranch_scc1 {lab}")
        base, imm = self.cnt_addr(ty, False)
        E.e(f"v_mov_b32 v{va}, s{S_T2}")
        E.e("s_mov_b64 exec, 1")
        E.e(f"global_load_dword v{vd}, v{va}, {base} offset:{imm} sc1")
        E.e("s_mov_b64 exec, -1")
        E.lab(lab)
        E.vq.append("@F")
    def flag_check(self, ty, lab):
        E = self.E
        E.vm_need("@F")
        E.e(f"s_cmp_lg_u32 s{S_W}, 0"); E.e(f"s_cbranch_scc1 {lab}go")
        E.e(f"v_readfirstlane_b32 s{S_T2}, v{self.fd}")
        E.e("s_nop 3")
        E.e(f"s_cmp_ge_u32 s{S_T2}, 8")
        E.e(f"s_cbranch_scc1 {lab}go")
        self.poll(ty, lab, True)
    def red_loads(self, ty, lab):
        E = self.E
        br = 0 if ty == "A" else 1
        E.e(f"s_add_u32 s{S_T2}, s{S_B}, {br*32}"); E.e(f"s_mul_i32 s{S_T2}, s{S_T2}, {8*PART}")
        E.e(f"s_add_u32 s16, s{P_WS}, s{S_T2}"); E.e(f"s_addc_u32 s17, s{P_WS+1}, 0"); E.e(f"s_mov_b32 s18, {8*PART}"); E.e("s_mov_b32 s19, 0x20000")
        for ps in (1, 0):
            base = 120 if ps == 0 else 80
            if ps == 1:
                E.e(f"s_cmp_lg_u32 s{S_W}, 7"); E.e(f"s_cbranch_scc1 {lab}p1")
            E.e(f"s_mov_b32 s{S_T2}, 0")
            for j in range(8):
                t = f"buffer_load_dwordx4 {vr(base+4*j)}, v{self.RO+ps}, s[16:19], s{S_T2} offen sc1"
                if ps == 1: E.e(t)
                else: E.vm(t, ("RL", j))
                if j < 7: E.e(f"s_add_u32 s{S_T2}, s{S_T2}, {PART}")
            if ps == 1: E.lab(f"{lab}p1")
    def red_sum(self, ty, lab):
        E = self.E
        br = 0 if ty == "A" else 1
        A = BF
        for ps in (1, 0):
            base = 120 if ps == 0 else 80
            if ps == 1:
                E.vm_need(("RL", 0))
                E.e(f"s_cmp_lg_u32 s{S_W}, 7"); E.e(f"s_cbranch_scc1 {lab}p2")
            for j in range(8):
                if ps == 0: E.vm_need(("RL", j))
                for k in range(4):
                    r = base + 4 * j + k
                    o = 0 if j == 0 else 8
                    E.e(f"v_lshlrev_b32 v{A+o+2*k}, 16, v{r}"); E.e(f"v_and_b32 v{A+o+1+2*k}, 0xffff0000, v{r}")
                if j:
                    for k in range(4): E.e(f"v_pk_add_f32 {vr(A+2*k,2)}, {vr(A+2*k,2)}, {vr(A+8+2*k,2)}")
            d = A + 16 + 4 * ps
            for k in range(4): E.e(f"v_cvt_pk_bf16_f32 v{d+k}, v{A+2*k}, v{A+1+2*k}")
            for h in range(2):
                t = f"buffer_store_dwordx2 {vr(d+2*h,2)}, v{self.RO+2+ps}, s[20:23], 0 offen offset:{br*896+32*h}"
                if ps == 1: E.e(t)
                else: E.vm(t, "OS")
            if ps == 1: E.lab(f"{lab}p2")
    def reduce_setup(self):
        E = self.E; R = self.RO
        E.e(f"s_mul_i32 s{S_T2}, s{S_B}, {80*1792}")
        E.e(f"s_add_u32 s20, s{P_OUT}, s{S_T2}"); E.e(f"s_addc_u32 s21, s{P_OUT+1}, 0"); E.e(f"s_mov_b32 s22, {80*1792}"); E.e("s_mov_b32 s23, 0x20000")
        E.e(f"s_mul_i32 s{S_T2}, s{S_JX}, 560")
        E.e(f"s_lshl_b32 s{S_T3}, s{S_W}, 6"); E.e(f"s_add_u32 s{S_T3}, s{S_T3}, s{S_T2}")
        E.e(f"s_add_u32 s{S_T2}, s{S_T2}, 512")
        E.e(f"v_add_u32 v104, s{S_T3}, v{V_LANE}")
        E.e(f"v_add_u32 v105, s{S_T2}, v{V_LANE}")
        for ps in range(2):
            it = 104 + ps
            E.e(f"v_lshlrev_b32 v{R+ps}, 4, v{it}")
            E.e(f"v_lshrrev_b32 v106, 6, v{it}")
            E.e(f"v_mul_u32_u24 v107, 205, v106"); E.e("v_lshrrev_b32 v107, 10, v107")
            E.e(f"v_mul_u32_u24 v108, 5, v107"); E.e("v_sub_u32 v108, v106, v108")
            E.e(f"v_and_b32 v109, 15, v{it}")
            E.e("v_lshl_add_u32 v108, v108, 4, v109")
            E.e("v_mul_u32_u24 v108, 1792, v108")
            E.e("v_lshl_add_u32 v108, v107, 6, v108")
            E.e(f"v_bfe_u32 v109, v{it}, 4, 2")
            E.e(f"v_lshl_add_u32 v{R+2+ps}, v109, 3, v108")
        E.e(f"v_cmp_gt_u32 vcc, 48, v{V_LANE}")
        E.e("v_mov_b32 v106, 0x7ff00000")
        E.e("s_nop 1")
        E.e(f"v_cndmask_b32 v{R+1}, v106, v{R+1}, vcc")
        E.e(f"v_cndmask_b32 v{R+3}, v106, v{R+3}, vcc")

    def srd(self, name, ptr, off_s, total, zero_w7=False):
        E = self.E; d = SRD[name]
        E.e(f"s_add_u32 s{d}, s{S_PTR+2*ptr}, s{off_s}")
        E.e(f"s_addc_u32 s{d+1}, s{S_PTR+2*ptr+1}, 0")
        E.e(f"s_sub_u32 s{d+2}, {total}, s{off_s}")
        E.e(f"s_mov_b32 s{d+3}, 0x20000")
        if zero_w7:
            E.e(f"s_cmp_eq_u32 s{S_W}, 7")
            E.e(f"s_cselect_b32 s{d+2}, 0, s{d+2}")

    def setup(self):
        E = self.E
        E.e("s_cmp_ge_u32 s2, 256"); E.e("s_cbranch_scc1 L_exit")
        E.e(f"s_load_dwordx16 s[{S_PTR}:{S_PTR+15}], s[0:1], 0")
        E.e(f"s_load_dwordx8 s[{S_PTR+16}:{S_PTR+23}], s[0:1], 64")
        E.e(f"s_load_dwordx2 s[{S_PTR+24}:{S_PTR+25}], s[0:1], 96")
        E.e(f"v_lshrrev_b32 v1, 6, v0")
        E.e(f"v_and_b32 v{V_LANE}, 63, v0")
        E.e(f"v_readfirstlane_b32 s{S_W}, v1")
        L = V_LANE
        E.e(f"v_and_b32 v1, 7, v{L}")
        E.e(f"v_lshrrev_b32 v2, 4, v{L}")
        E.e(f"v_lshlrev_b32 v3, 1, v2")
        E.e(f"v_xor_b32 v1, v1, v3")
        E.e(f"v_lshlrev_b32 v1, 4, v1")
        E.e(f"v_lshrrev_b32 v4, 3, v{L}")
        E.e(f"v_lshl_add_u32 v{V_LPKV}, v4, 9, v1")
        E.e(f"v_mul_u32_u24 v5, 896, v4")
        E.e(f"v_add_u32 v{V_LPWO}, v5, v1")
        E.e(f"v_and_b32 v5, 3, v4")
        E.e(f"v_lshrrev_b32 v6, 2, v4")
        E.e(f"v_lshl_add_u32 v5, v6, 3, v5")
        E.e(f"v_lshl_add_u32 v{V_LPWQ}, v5, 13, v1")
        E.e(f"s_lshl_b32 s{S_RING0}, s{S_W}, 13")
        E.e(f"s_add_u32 s{S_RING0}, s{S_RING0}, {LDS_RING}")
        E.e(f"s_add_u32 s{S_RING1}, s{S_RING0}, 4096")
        E.e(f"s_lshr_b32 s{S_I}, s{S_W}, 2")
        E.e(f"s_and_b32 s{S_J}, s{S_W}, 3")
        E.e(f"s_lshl_b32 s{S_GOFF}, s{S_I}, 15")
        E.e(f"v_bfe_u32 v5, v{L}, 2, 3")
        E.e(f"v_lshrrev_b32 v6, 1, v5")
        E.e(f"v_lshlrev_b32 v6, 1, v6")
        E.e(f"v_bfe_u32 v7, v{L}, 1, 1")
        E.e(f"v_xor_b32 v6, v6, v7")
        E.e(f"v_lshlrev_b32 v6, 4, v6")
        E.e(f"v_lshl_add_u32 v6, v5, 7, v6")
        E.e(f"v_and_b32 v8, 1, v{L}")
        E.e(f"v_lshl_add_u32 v6, v8, 3, v6")
        E.e(f"v_lshrrev_b32 v9, 5, v{L}")
        E.e(f"v_lshl_add_u32 v6, v9, 10, v6")
        E.e(f"v_add_u32 v{V_TR4}, s{S_RING0}, v6")
        for t in range(1, 4): E.e(f"v_xor_b32 v{V_TR4+t}, {t<<5}, v{V_TR4}")
        E.e(f"v_and_b32 v5, 15, v{L}")
        E.e(f"v_and_b32 v6, 6, v{L}")
        E.e(f"v_xor_b32 v6, v6, v2")
        E.e(f"v_lshlrev_b32 v6, 4, v6")
        E.e(f"v_lshl_add_u32 v6, v5, 7, v6")
        E.e(f"v_add_u32 v{V_AK}, s{S_RING0}, v6")
        E.e(f"v_xor_b32 v{V_AK+1}, 64, v{V_AK}")
        E.e(f"v_xor_b32 v6, v5, v3")
        E.e(f"v_lshl_add_u32 v6, v2, 4, v6")
        E.e(f"v_lshlrev_b32 v{V_BA}, 4, v6")
        E.e(f"v_add_u32 v{V_BB}, 40960, v{V_BA}")
        E.e(f"s_mul_i32 s{S_T0}, s{S_I}, 40960")
        E.e(f"v_add_u32 v{V_BH}, s{S_T0}, v{V_BA}")
        E.e(f"s_mul_i32 s{S_WB}, s{S_W}, 10240")
        E.e(f"s_mov_b32 s{S_C}, 0x3db8aa3b")
        J, B = S_JX, S_B
        E.e(f"s_and_b32 s{J}, s2, 7"); E.e(f"s_lshr_b32 s{B}, s2, 3")
        T = S_T0
        if self.opt.cpf:
            E.e(f"s_cmp_lg_u32 s{S_W}, 7"); E.e("s_cbranch_scc1 L_nocpf")
            E.e("s_getpc_b64 s[100:101]")
            E.e(f"v_and_b32 v11, 31, v{L}"); E.e("v_lshlrev_b32 v11, 7, v11")
            E.e(f"s_lshl_b32 s{S_T0}, s{B}, 12"); E.e(f"v_add_u32 v11, s{S_T0}, v11")
            E.e(f"v_min_u32 v11, {self.opt.cpf * 1024}, v11")
            E.e("global_load_dword v255, v11, s[100:101]")
            E.lab("L_nocpf")
        E.e(f"s_lshr_b32 s{T}, s{B}, 1")
        for _ in range(2):
            E.e(f"s_sub_u32 s{T+1}, s{T}, 7"); E.e(f"s_cmp_ge_u32 s{T}, 7"); E.e(f"s_cselect_b32 s{T}, s{T+1}, s{T}")
        for kp in range(7):
            E.e(f"s_add_u32 s{T+1}, s{T}, {kp}"); E.e(f"s_sub_u32 s{T+2}, s{T+1}, 7"); E.e(f"s_cmp_ge_u32 s{T+1}, 7")
            E.e(f"s_cselect_b32 s{T+1}, s{T+2}, s{T+1}"); E.e(f"s_lshl_b32 s{S_ROT+kp}, s{T+1}, 19")
        E.e(f"s_add_u32 s{T+1}, s{T}, s{S_W}"); E.e(f"s_sub_u32 s{T+2}, s{T+1}, 7"); E.e(f"s_cmp_ge_u32 s{T+1}, 7")
        E.e(f"s_cselect_b32 s{T+1}, s{T+2}, s{T+1}"); E.e(f"s_lshl_b32 s99, s{T+1}, 7")
        E.e(f"s_mul_i32 s{S_WOPF}, s{B}, {16*896}")
        E.e("s_waitcnt lgkmcnt(0)")
        E.e(f"s_bitcmp1_b32 s{B}, 0")
        for pi in (0, 3):
            a_, b_ = S_PTR + 2 * pi, S_PTR + 2 * (pi + 5)
            E.e(f"s_cselect_b64 s[{T}:{T+1}], s[{b_}:{b_+1}], s[{a_}:{a_+1}]")
            E.e(f"s_cselect_b64 s[{b_}:{b_+1}], s[{a_}:{a_+1}], s[{b_}:{b_+1}]")
            E.e(f"s_mov_b64 s[{a_}:{a_+1}], s[{T}:{T+1}]")
        for ty, pb in (("A", 0), ("B", 5)):
            E.e(f"s_mul_i32 s{T}, s{B}, 71680"); E.e(f"s_add_u32 s{T}, s{T}, s99")
            self.srd(ty + "X", pb + 0, T, 32 * 71680, True)
            E.e(f"s_lshl_b32 s{T+1}, s{S_W}, 7")
            E.e(f"s_lshl_b32 s{T}, s{J}, 10"); E.e(f"s_add_u32 s{T}, s{T}, s{T+1}")
            self.srd(ty + "WQ", pb + 3, T, 448 * 8192)
            E.e(f"s_mul_i32 s{T}, s{J}, {512*896}"); E.e(f"s_add_u32 s{T}, s{T}, s{T+1}")
            self.srd(ty + "WO", pb + 4, T, 4096 * 896, True)
            if ty == "A":
                tot = 32 * 8 * 262144
                E.e(f"s_lshl_b32 s{T+2}, s2, 18"); E.e(f"s_lshl_b32 s{T}, s{S_I}, 13")
            else:
                tot = 32 * 16 * 262144
                E.e(f"s_lshl_b32 s{T+2}, s2, 19"); E.e(f"s_lshl_b32 s{T}, s{S_I}, 18")
            E.e(f"s_add_u32 s{T+2}, s{T+2}, s{T}")
            E.e(f"s_lshl_b32 s{T}, s{S_J}, 15"); E.e(f"s_add_u32 s{T}, s{T}, s{T+2}")
            self.srd(ty + "K", pb + 1, T, tot)
            E.e(f"s_lshl_b32 s{T}, s{S_J}, 7"); E.e(f"s_add_u32 s{T}, s{T}, s{T+2}")
            self.srd(ty + "V", pb + 2, T, tot)
            br = 0 if ty == "A" else 1
            E.e(f"s_add_u32 s{T}, s2, {br*256}"); E.e(f"s_mul_i32 s{T}, s{T}, {PART}"); E.e(f"s_add_u32 s{T}, s{T}, s{S_WB}")
            self.srd(ty + "P", 12, T, 512 * PART, True)
        E.e(f"s_lshr_b32 s{T}, s{B}, 1"); E.e(f"s_add_u32 s{T}, s{T}, s{J}"); E.e(f"s_and_b32 s{T}, s{T}, 3")
        for c in range(4):
            E.e(f"s_add_u32 s{T+1}, s{T}, {c}"); E.e(f"s_and_b32 s{T+1}, s{T+1}, 3"); E.e(f"s_lshl_b32 s{S_KC+c}, s{T+1}, 7")
        E.e(f"s_sub_u32 s{T+1}, s{S_J}, s{T}"); E.e(f"s_and_b32 s{T+1}, s{T+1}, 3"); E.e(f"s_mul_i32 s{T+1}, s{T+1}, 10240")
        E.e(f"s_mul_i32 s{S_WB_Q}, s{S_I}, 40960"); E.e(f"s_add_u32 s{S_WB_Q}, s{S_WB_Q}, s{T+1}")
        if self.opt.orot: E.e(f"s_lshr_b32 s{T}, s{B}, 1")
        else: E.e(f"s_mov_b32 s{T}, 0")
        for c in range(8):
            E.e(f"s_add_u32 s{T+1}, s{T}, {c}"); E.e(f"s_and_b32 s{T+1}, s{T+1}, 7"); E.e(f"s_mul_i32 s{S_RO+c}, s{T+1}, {64*896}")
        E.e(f"s_sub_u32 s{T+1}, s{S_W}, s{T}"); E.e(f"s_and_b32 s{T+1}, s{T+1}, 7"); E.e(f"s_mul_i32 s{S_WB_O}, s{T+1}, 10240")
        self.nst = 0
        if self.opt.stamps:
            E.e(f"v_mov_b32 v{V_ST}, 0")
            self.stamp()
            E.e(f"s_memrealtime s[{S_T2}:{S_T3}]"); E.e("s_waitcnt lgkmcnt(0)"); E.e(f"v_writelane_b32 v{V_ST}, s{S_T2}, 62")
        if self.opt.prio:
            E.e(f"s_cmp_ge_u32 s{S_W}, 4"); E.e("s_cbranch_scc0 L_noprio"); E.e("s_setprio 1"); E.lab("L_noprio")
        E.e(f"s_and_b32 s{S_PAR}, s{B}, 1")

    def wo_touch(self):
        E = self.E
        E.e(f"v_and_b32 v{V_T0+3}, 15, v{V_LANE}")
        E.e(f"v_mul_u32_u24 v{V_T0+3}, 896, v{V_T0+3}")
        for tt in "AB": E.vm(f"buffer_load_dword v255, v{V_T0+3}, {sr(SRD[tt+'WO'])}, s{S_WOPF} offen", "T")

    def wq_touch(self, ty):
        E = self.E
        v = V_T0 + 3
        E.e(f"v_min_u32 v{v}, 27, v{V_LANE}"); E.e(f"v_lshlrev_b32 v{v}, 13, v{v}")
        E.e(f"s_lshr_b32 s{S_T2}, s{S_B}, 1"); E.e(f"s_mul_i32 s{S_T2}, s{S_T2}, {28*8192}")
        E.vm(f"buffer_load_dword v255, v{v}, {sr(self.srd_of(ty, 'WQ'))}, s{S_T2} offen", "T")

    def program(self, t1, t2):
        E = self.E
        self.prog = t1 + t2
        E.q = []; E.vq = []; E.st = 0
        self.flags = set()
        self.st = round_stream(t1) + round_stream(t2)
        self.plan_units()
        self.nst = 1
        fs = self.opt.fstart
        if fs:
            self.ufree = 2; self.pump()
            E.e("s_barrier")
            self.untracked = True
            E.e(f"s_cmp_ge_u32 s{S_W}, 4"); E.e(f"s_cbranch_scc1 L_xa")
            self.x_load(t1)
            E.lab(f"L_xa")
            self.untracked = False
            self.ufree = 4; self.pump()
            self.x_addr(V_T0)
            for unit in range(2): self.site_rd(0, unit)
            E.e(f"s_cmp_ge_u32 s{S_W}, 4"); E.e(f"s_cbranch_scc1 L_xs")
            for f in range(10): E.e(self.xw_ins(V_T0, f))
            E.lab(f"L_xs")
        else:
            self.pump()
            self.x_load(t1)
            self.x_addr(V_T0)
            for unit in range(2):
                self.site_rd(0, unit); self.site_rf(0, unit)
            for f in range(10): self.x_write1(V_T0, f)
        if self.opt.wpf == 1: self.wo_touch()
        self.barrier()
        n = self.round(t1, 0, True, t2)
        n = self.round(t2, n, False, t1)
        assert n == len(self.st)
        l1, l2 = f"L_r{self.prog}1", f"L_r{self.prog}2"
        self.red_loads(t1, l1)
        E.vm_need("ST")
        self.barrier()
        self.signal(t2, f"L_sig{self.prog}b", self.opt.wsc)
        self.red_sum(t1, l1)
        self.stamp()
        self.poll(t2, l2, False, self.opt.wsc)
        self.stamp()
        self.red_loads(t2, l2)
        self.red_sum(t2, l2)
        if self.opt.stamps:
            E.e("s_waitcnt vmcnt(0)")
            self.stamp()
            E.e(f"s_memrealtime s[{S_T2}:{S_T3}]"); E.e("s_waitcnt lgkmcnt(0)"); E.e(f"v_writelane_b32 v{V_ST}, s{S_T2}, 63")
            E.e(f"s_lshl_b32 s{S_T0}, s2, 3"); E.e(f"s_add_u32 s{S_T0}, s{S_T0}, s{S_W}"); E.e(f"s_lshl_b32 s{S_T0}, s{S_T0}, 8")
            E.e(f"s_add_u32 s{S_T0}, s{S_T0}, {64<<20}")
            E.e(f"v_lshlrev_b32 v0, 2, v{V_LANE}"); E.e(f"v_add_u32 v0, s{S_T0}, v0")
            E.e(f"global_store_dword v0, v{V_ST}, s[{P_WS}:{P_WS+1}]")
        E.e("s_endpgm")

    def build(self):
        E = self.E
        k = NAME + "_kernel"
        head = HDR + f"; @launch grid=(256,1,1) block=(512,1,1) lds={LDS_TOTAL}\n" + '.amdgcn_target "amdgcn-amd-amdhsa--gfx950"\n'
        E.L += [".text", f".globl {k}", ".p2align 8", f".type {k},@function", f"{k}:"]
        self.upend = None
        self.setup()
        head_l = E.L
        progs = {}
        for p in ("AB", "BA"):
            E.L = []; self.program(p[0], p[1]); progs[p] = E.L
        pa, pb = progs["AB"], progs["BA"]
        n = 0
        while pa[n] == pb[n]: n += 1
        n -= self.opt.seam
        while not pa[n].startswith("v_mfma"): n -= 1
        f, j = ("BA", "AB") if self.opt.bafirst else ("AB", "BA")
        E.L = head_l + pa[:n] + [f"s_cmp_eq_u32 s{S_PAR}, {0 if j == 'AB' else 1}", "s_cbranch_scc1 L_other"] + progs[f][n:] + ["L_exit:", "s_endpgm", "L_other:"] + progs[j][n:]
        print("common prefix", n, "of", len(pa), file=sys.stderr)
        tail = ['.section .rodata,"a"', ".p2align 6", f".amdhsa_kernel {k}", "  .amdhsa_next_free_vgpr 256", "  .amdhsa_next_free_sgpr 102",
                "  .amdhsa_accum_offset 256", "  .amdhsa_group_segment_fixed_size 0", "  .amdhsa_kernarg_size 104",
                "  .amdhsa_user_sgpr_count 2", "  .amdhsa_user_sgpr_kernarg_segment_ptr 1",
                "  .amdhsa_system_sgpr_workgroup_id_x 1", "  .amdhsa_float_denorm_mode_32 3", ".end_amdhsa_kernel"]
        return head + "\n".join(E.L + tail) + "\n"

def main():
    ap = argparse.ArgumentParser()
    ap.add_argument("-o", default=f"cdna_kernels/{NAME}.s")
    ap.add_argument("--stamps", action="store_true")
    ap.add_argument("--xpv", default="")
    ap.add_argument("--nont", default="")
    for nm, d in (("wpf", 0), ("xpf", 0), ("wqnt", 0), ("prio", 0), ("s0", 1), ("s1", 6), ("s2", 8), ("s3", 13), ("sh0", 4), ("eb", 28),
                  ("nex", 5), ("dw", 4), ("dk", 4), ("sb", 0), ("sbi", 262), ("sbn", 1), ("sbs", 80), ("qt", 0), ("qt2", 240), ("pk", 1), ("bafirst", 1), ("seam", 0), ("orot", 1), ("flip", 0), ("wsc", 1), ("wss", 4352), ("slp", 4), ("td", 5), ("mo", 1), ("xp0", 172), ("xps", 20), ("fstart", 1), ("xw2", 70), ("xb2", 110), ("cpf", 0), ("nexb", 1), ("x1nt", 0), ("x2nt", 0), ("wb", 0), ("sh2", 0), ("d0", 1), ("d1", 3), ("d2", 5), ("dst", 0), ("dst0", 2), ("dsts", 1), ("xop", 15), ("xops", 40), ("qin", 2)):
        ap.add_argument("--" + nm, type=int, default=d)
    opt = ap.parse_args()
    assert opt.nex >= 1
    open(opt.o, "w").write(Gen(opt).build())
if __name__ == "__main__": main()
```
